```python
import torch

def _softmax(x, axis=-1):
    return torch.softmax(x, dim=axis)
def _gelu(x):
    return torch.nn.functional.gelu(x, approximate="tanh")
def _silu(x):
    return torch.nn.functional.silu(x)
def _sigmoid(x):
    return torch.sigmoid(x)
def _layernorm(x, axis=-1, eps=1e-5):
    m = x.mean(dim=axis, keepdim=True)
    v = x.var(dim=axis, keepdim=True, unbiased=False)
    return (x - m) / torch.sqrt(v + eps)
def _scatter_add(tgt, idx, src, axis=0):
    return tgt.clone().index_add_(axis, idx, src)
def _segment_sum(src, seg, n):
    out = torch.zeros((n,) + src.shape[1:], dtype=src.dtype)
    return out.index_add_(0, seg, src)
def _pad(x, pw):
    flat = tuple(v for pair in reversed(pw) for v in pair)
    return torch.nn.functional.pad(x, flat)

kernel_name = 'gated_mix__softmax_full_mha__dense_activation_squared_relu__prompt'

def setup_inputs():

    _w = (lambda a: (lambda t: t.to(torch.bfloat16) if t.is_floating_point() else t)(torch.as_tensor(a)))
    def _A_setup():
        B, S, D = 1, 2048, 576
        return {
            "x": _w((lambda *s: torch.randn(*s, dtype=torch.bfloat16) * 0.05)(B, S, D)),
            "wqkv": _w((lambda *s: torch.randn(*s, dtype=torch.bfloat16) * 0.8)(D, 3 * D)),
            "wo": _w((lambda *s: torch.randn(*s, dtype=torch.bfloat16) * 0.1)(D, D)),
        }
    _A_in = _A_setup()

    def _B_setup():
        B, S, D, F = 1, 2048, 576, 4608
        return {
            "x": _w((lambda *s: torch.randn(*s, dtype=torch.bfloat16) * 0.05)(B, S, D)),
            "w1": _w((lambda *s: torch.randn(*s, dtype=torch.bfloat16) * 0.05)(D, F)),
            "b1": _w((lambda *s: torch.randn(*s, dtype=torch.bfloat16) * 0.05)(F)),
            "w2": _w((lambda *s: torch.randn(*s, dtype=torch.bfloat16) * 0.05)(F, D)),
            "b2": _w((lambda *s: torch.randn(*s, dtype=torch.bfloat16) * 0.05)(D)),
        }
    _B_in = _B_setup()

    return {
        "A_x": _A_in["x"],
        "A_wqkv": _A_in["wqkv"],
        "A_wo": _A_in["wo"],
        "B_x": _B_in["x"],
        "B_w1": _B_in["w1"],
        "B_b1": _B_in["b1"],
        "B_w2": _B_in["w2"],
        "B_b2": _B_in["b2"],
        "gate_w": _w((lambda *s: torch.randn(*s, dtype=torch.bfloat16) * 0.05)(576) * 16.0),
    }

def reference(A_x, A_wqkv, A_wo, B_x, B_w1, B_b1, B_w2, B_b2, gate_w):
    def _A_ref(x, wqkv, wo):
        B, S, D = x.shape
        H = 32; Dh = D // H
        qkv = (lambda x, *d: x.permute(*d))((x @ wqkv).reshape(B, S, 3, H, Dh), 2, 0, 3, 1, 4)
        q, k, v = qkv[0], qkv[1], qkv[2]
        scale = Dh ** -0.5
        scores = torch.einsum("bhqd,bhkd->bhqk", q, k) * scale
        p = _softmax(scores, axis=-1)
        o = torch.einsum("bhqk,bhkd->bhqd", p, v)
        return (lambda x, *d: x.permute(*d))(o, 0, 2, 1, 3).reshape(B, S, D) @ wo

    def _B_ref(x, w1, b1, w2, b2):
        h = torch.einsum("bsd,df->bsf", x, w1) + b1
        zero = torch.zeros_like(h)
        r = torch.where(h > zero, h, zero)
        h = r * r
        out = torch.einsum("bsf,fd->bsd", h, w2) + b2
        return out

    x = A_x
    g = _sigmoid((x * gate_w).sum(-1, keepdims=True))
    a = _A_ref(x, A_wqkv, A_wo)
    b = _B_ref(x, B_w1, B_b1, B_w2, B_b2)
    return g * a + (1 - g) * b
```

```python
NAME = "gated_mix__softmax_full_mha__dense_activation_squared_relu__prompt"
WS_H   = 0
WS_QF  = 0x1200000
QT = 1152; QH = 64*QT
WS_KV  = WS_QF + 32*QH
KT = 2560; KH = 64*KT
WS_MX  = WS_KV + 32*KH
WS_G   = WS_MX + 4096
WS_O   = WS_G + 8192
WS_P   = WS_O + 2048*576*2
PSZ = 2048*576*2

class Asm:
    def __init__(s): s.l = []; s.vm = []
    def __call__(s, t): s.l.append("  " + t)
    def lab(s, t): s.l.append(t + ":")
    def c(s, t): s.l.append("  ; " + t)
    def vmem(s, t, tag): s.l.append("  " + t); s.vm.append(tag)
    def wait_vm(s, tags):
        idx = [i for i, t in enumerate(s.vm) if t in tags]
        if not idx: return
        n = len(s.vm) - 1 - max(idx)
        n = min(n, 63)
        s.l.append(f"  s_waitcnt vmcnt({n})")
        s.vm = s.vm[len(s.vm) - n:] if n else []
    def text(s): return "\n".join(s.l) + "\n"

def srd(a, d, base, off, size):
    if off:
        a(f"s_add_u32 s{d}, s{base}, {off}")
        a(f"s_addc_u32 s{d+1}, s{base+1}, 0")
    else:
        a(f"s_mov_b32 s{d}, s{base}"); a(f"s_mov_b32 s{d+1}, s{base+1}")
    a(f"s_mov_b32 s{d+2}, {size}")
    a(f"s_mov_b32 s{d+3}, 0x20000")

def kdesc(name, vg, sg=96):
    vg4 = (vg + 3) // 4 * 4
    return f""".p2align 6
.amdhsa_kernel {name}
  .amdhsa_next_free_vgpr {vg}
  .amdhsa_next_free_sgpr {sg}
  .amdhsa_accum_offset {vg4}
  .amdhsa_group_segment_fixed_size 0
  .amdhsa_kernarg_size 96
  .amdhsa_user_sgpr_count 2
  .amdhsa_user_sgpr_kernarg_segment_ptr 1
  .amdhsa_system_sgpr_workgroup_id_x 1
.end_amdhsa_kernel
"""
def khead(name):
    return f".globl {name}\n.p2align 8\n.type {name},@function\n{name}:\n"

STG = 9216

class Gemm:
    def __init__(s, a, nsteps, lda, ldb, R, PD, WM, WN, MT, trans, vacc, vB, vA, vaddr, sA, sB, sBk, sAk, sM0, adirect=False, atiled=False):
        s.__dict__.update(locals()); del s.__dict__['s']
        s.NT = 3 if adirect else 9
        s.NW = 3 if adirect else 4
        s.BM = WM * MT * 16
        s.ASZ = 0 if adirect else s.BM * 64
        s.STG = s.ASZ + WN * 9216
        s.nBch = WN * 576 // s.NW
        s.nBi = (s.nBch + 63) // 64
        s.nAi = 0 if adirect else s.BM * 4 // 4 // 64
        s.lg = []
        s.opt = getattr(a, 'opt', ())
    def setup(s, sw, vt, vtid):
        a = s.a; va = s.vaddr; m = s.sM0
        a(f"v_and_b32 v{vt}, 63, v{vtid}")
        a(f"s_mul_i32 s{m}, s{sw}, {s.nBch}")
        for i in range(s.nBi):
            q = vt + 1; rho = vt + 2; cc = vt + 3; k = vt + 4
            a(f"v_add_u32 v{q}, s{m}, v{vt}")
            if i: a(f"v_add_u32 v{q}, {64*i}, v{q}")
            a(f"v_min_u32 v{q}, {s.WN*576-1}, v{q}")
            if s.WN == 2:
                a(f"v_cmp_le_u32 vcc, 576, v{q}"); a(f"v_mov_b32 v{cc}, 0"); a(f"v_mov_b32 v{k}, 576")
                a(f"v_cndmask_b32 v{k}, v{cc}, v{k}, vcc"); a(f"v_sub_u32 v{q}, v{q}, v{k}"); a(f"v_lshrrev_b32 v{va+i}, 1, v{k}")
            a(f"v_mul_u32_u24 v{rho}, 3641, v{q}"); a(f"v_lshrrev_b32 v{rho}, 16, v{rho}")
            a(f"v_mul_u32_u24 v{cc}, 18, v{rho}"); a(f"v_sub_u32 v{cc}, v{q}, v{cc}")
            a(f"v_bfe_u32 v{k}, v{rho}, 2, 2"); a(f"v_lshlrev_b32 v{k}, 3, v{k}"); a(f"v_and_b32 v{q}, 3, v{rho}"); a(f"v_add_u32 v{k}, v{k}, v{q}")
            a(f"v_lshrrev_b32 v{q}, 4, v{rho}"); a(f"v_lshl_add_u32 v{k}, v{q}, 2, v{k}")
            a(f"v_mul_u32_u24 v{k}, {s.ldb*2}, v{k}"); a(f"v_lshl_add_u32 v{k}, v{cc}, 4, v{k}")
            if s.WN == 2: a(f"v_add_u32 v{k}, v{k}, v{va+i}")
            if i % 4: a(f"v_subrev_u32 v{va+i}, {1024*(i%4)}, v{k}")
            else: a(f"v_mov_b32 v{va+i}, v{k}")
        a(f"s_lshl_b32 s{m}, s{m}, 4"); a(f"s_add_u32 s{m}, s{m}, {s.ASZ}")
        a(f"v_lshrrev_b32 v{vt+1}, 2, v{vt}"); a(f"v_mul_u32_u24 v{vt+1}, 288, v{vt+1}"); a(f"v_and_b32 v{vt+2}, 3, v{vt}")
        a(f"v_lshl_add_u32 v{va+7}, v{vt+2}, 3, v{vt+1}")
        if s.adirect: a(f"s_mul_i32 s{m+2}, s{sw}, 96")
        elif s.WN == 2: a(f"s_and_b32 s{m+2}, s{sw}, 1"); a(f"s_mul_i32 s{m+2}, s{m+2}, 9216"); a(f"s_add_u32 s{m+2}, s{m+2}, {s.ASZ}")
        else: a(f"s_mov_b32 s{m+2}, {s.ASZ}")
        a(f"v_add_u32 v{va+7}, s{m+2}, v{va+7}")
        if not s.adirect:
            a(f"s_mul_i32 s{m+1}, s{sw}, {s.nAi*64}")
            for i in range(s.nAi):
                a(f"v_add_u32 v{vt+1}, s{m+1}, v{vt}")
                if i: a(f"v_add_u32 v{vt+1}, {64*i}, v{vt+1}")
                if s.atiled:
                    a(f"v_lshlrev_b32 v{vt+2}, 4, v{vt+1}")
                    if i: a(f"v_subrev_u32 v{va+5+i}, {1024*i}, v{vt+2}")
                    else: a(f"v_mov_b32 v{va+5}, v{vt+2}")
                    continue
                a(f"v_lshrrev_b32 v{vt+2}, 2, v{vt+1}"); a(f"v_bfe_u32 v{vt+3}, v{vt+2}, 3, 1"); a(f"v_mul_u32_u24 v{vt+3}, 3, v{vt+3}")
                a(f"v_and_b32 v{vt+1}, 3, v{vt+1}"); a(f"v_xor_b32 v{vt+1}, v{vt+1}, v{vt+3}")
                a(f"v_mul_u32_u24 v{vt+2}, {s.lda}, v{vt+2}"); a(f"v_lshl_add_u32 v{vt+2}, v{vt+1}, 4, v{vt+2}")
                if i: a(f"v_subrev_u32 v{va+5+i}, {1024*i}, v{vt+2}")
                else: a(f"v_mov_b32 v{va+5}, v{vt+2}")
            a(f"s_lshl_b32 s{m+1}, s{m+1}, 4")
            a(f"v_and_b32 v{vt+1}, 15, v{vt}"); a(f"v_bfe_u32 v{vt+2}, v{vt}, 3, 1"); a(f"v_mul_u32_u24 v{vt+2}, 3, v{vt+2}")
            a(f"v_lshrrev_b32 v{vt+3}, 4, v{vt}"); a(f"v_xor_b32 v{vt+2}, v{vt+2}, v{vt+3}"); a(f"v_lshlrev_b32 v{vt+2}, 4, v{vt+2}")
            a(f"v_lshl_add_u32 v{va+8}, v{vt+1}, 6, v{vt+2}")
            a(f"s_lshr_b32 s{m+2}, s{sw}, {1 if s.WN == 2 else 0}"); a(f"s_mul_i32 s{m+2}, s{m+2}, {s.MT*1024}")
            a(f"v_add_u32 v{va+8}, s{m+2}, v{va+8}")
    def issue(s, st, stA=None):
        L = []
        if st < s.nsteps and 'nob' not in s.opt:
            slot = st % s.R
            rem = s.nBch - 64 * (s.nBi - 1)
            for i in range(s.nBi):
                G = []
                if i % 4 == 0: G += [('s', f"s_add_u32 m0, s{s.sM0}, {slot*s.STG + 1024*i}", None), ('s', "s_nop 0", None)]
                part = (i == s.nBi - 1 and rem < 64)
                if part: G.append(('s', "s_mov_b32 exec_hi, 0" if rem == 32 else f"s_mov_b64 exec, {hex((1 << rem) - 1)}", None))
                G.append(('v', f"buffer_load_dwordx4 v{s.vaddr+i}, s[{s.sB}:{s.sB+3}], s{s.sBk} offen offset:{1024*(i%4)} lds", ('S', st)))
                if part: G.append(('s', "s_mov_b64 exec, -1", None))
                if i == s.nBi - 1: G.append(('s', f"s_add_u32 s{s.sBk}, s{s.sBk}, {s.ldb*64}", None))
                L.append(G)
        if st < s.nsteps and not s.adirect and 'noa' not in s.opt:
            slot = st % s.R
            for i in range(s.nAi):
                G = []
                if i == 0: G += [('s', f"s_add_u32 m0, s{s.sM0+1}, {slot*s.STG}", None), ('s', "s_nop 0", None)]
                G.append(('v', f"buffer_load_dwordx4 v{s.vaddr+5+i}, s[{s.sA}:{s.sA+3}], s{s.sAk} offen offset:{1024*i} lds", ('S', st)))
                if i == s.nAi - 1: G.append(('s', f"s_add_u32 s{s.sAk}, s{s.sAk}, {8192 if s.atiled else 64}", None))
                L.append(G)
        if s.adirect and stA is not None and 0 <= stA < s.nsteps:
            for mt in range(s.MT):
                r = s.vA + (stA % s.PD) * 8 + mt * 4
                L.append([('v', f"buffer_load_dwordx4 v[{r}:{r+3}], v{s.vaddr+5+mt}, s[{s.sA}:{s.sA+3}], s{s.sAk} offen", ('A', stA))] + ([('s', f"s_add_u32 s{s.sAk}, s{s.sAk}, 1024", None)] if mt == s.MT - 1 else []))
        return L
    def emit(s, L):
        for G in L:
            for k, t, tag in G:
                if k == 'v': s.a.vmem(t, tag)
                else: s.a(t)
    def ds(s, t, tag):
        if 'nolds' in s.opt: return
        s.a(t); s.lg.append(tag)
    def wait_lg(s, tags):
        idx = [i for i, t in enumerate(s.lg) if t in tags]
        if not idx: return
        n = min(len(s.lg) - 1 - max(idx), 15)
        s.a(f"s_waitcnt lgkmcnt({n})")
        s.lg = s.lg[len(s.lg) - n:] if n else []
    def readsB(s, st, j):
        r = s.vB + 4 * j; o = (st % s.R) * s.STG + 32 * j
        s.ds(f"ds_read_b64_tr_b16 v[{r}:{r+1}], v{s.vaddr+7} offset:{o}", ('B', st, j))
        s.ds(f"ds_read_b64_tr_b16 v[{r+2}:{r+3}], v{s.vaddr+7} offset:{o+4608}", ('B', st, j))
    def readsA(s, st):
        if s.adirect: return
        for mt in range(s.MT):
            r = s.vA + (st % 2) * s.MT * 4 + mt * 4
            s.ds(f"ds_read_b128 v[{r}:{r+3}], v{s.vaddr+8} offset:{(st % s.R) * s.STG + mt * 1024}", ('A', st))
    def prologue_issue(s):
        for st in range(s.PD): s.emit(s.issue(st, st - 1))
    def run(s):
        a = s.a; NT = s.NT; PD = s.PD
        rep = [o for o in s.opt if o.startswith('rep')]
        if rep: a(f"s_mov_b32 s60, {rep[0][3:]}"); a.lab("{P}REP")
        a.wait_vm({('S', 0)}); a("s_barrier")
        s.readsA(0)
        for j in range(NT): s.readsB(0, j)
        for st in range(s.nsteps):
            a.c(f"---- step {st}")
            more = st + 1 < s.nsteps
            need = {('A', st)}
            if more: need.add(('S', st + 1))
            a.wait_vm(need)
            if more: a("s_barrier")
            L = s.issue(st + PD, st + PD - 1)
            nper = (len(L) + NT - 1) // NT
            if more: s.readsA(st + 1)
            for j in range(NT):
                s.wait_lg({('B', st, j), ('A', st)})
                for mt in range(s.MT):
                    acc = s.vacc + (mt * NT + j) * 4
                    ra = s.vA + ((st % PD) * 8 if s.adirect else (st % 2) * s.MT * 4) + mt * 4
                    rb = s.vB + 4 * j
                    x, y = (rb, ra) if s.trans else (ra, rb)
                    a(f"v_mfma_f32_16x16x32_bf16 v[{acc}:{acc+3}], v[{x}:{x+3}], v[{y}:{y+3}], v[{acc}:{acc+3}]")
                    if mt == 0: s.emit(L[:nper]); L = L[nper:]
                if more: s.readsB(st + 1, j)
            s.emit(L)
        if rep:
            a("s_sub_u32 s60, s60, 1"); a("s_cmp_lg_u32 s60, 0"); a("s_cbranch_scc1 {P}REP"); a.opt = tuple(o for o in a.opt if not o.startswith('rep'))
        a("s_nop 7"); a("s_nop 1")
```

```python
from gen_core import *
VACC=0; VB=144; VAF=180; VADDR=212; VT=221; TID=230
def wave_max(a, v, t):
    for c in ("row_ror:8","row_ror:4","row_ror:2","row_ror:1"):
        a("s_nop 1"); a(f"v_max_f32_dpp v{v}, v{v}, v{v} {c} row_mask:0xf bank_mask:0xf")
    a(f"v_mov_b32 v{t}, v{v}"); a("s_nop 1"); a(f"v_permlane16_swap_b32 v{t}, v{v}"); a("s_nop 1"); a(f"v_max_f32 v{v}, v{v}, v{t}")
    a(f"v_mov_b32 v{t}, v{v}"); a("s_nop 1"); a(f"v_permlane32_swap_b32 v{t}, v{v}"); a("s_nop 1"); a(f"v_max_f32 v{v}, v{v}, v{t}")

def h_epilogue(a, pol=" sc1"):
    t = VT
    for i in range(144): a(f"v_max_f32 v{i}, 0, v{i}")
    for i in range(0, 144, 2): a(f"v_pk_mul_f32 v[{i}:{i+1}], v[{i}:{i+1}], v[{i}:{i+1}]")
    a(f"v_and_b32 v{t}, 15, v{TID}"); a(f"v_bfe_u32 v{t+1}, v{TID}, 3, 1"); a(f"v_mul_u32_u24 v{t+1}, 3, v{t+1}")
    a(f"v_bfe_u32 v{t+2}, v{TID}, 4, 1"); a(f"v_bfe_u32 v{t+3}, v{TID}, 5, 1")
    a(f"s_lshr_b32 s45, s21, 1"); a("s_lshl_b32 s45, s45, 12")
    a(f"v_lshlrev_b32 v{t}, 6, v{t}"); a(f"v_add_u32 v{t}, s45, v{t}")
    a(f"v_lshl_add_u32 v{t+4}, v{t+2}, 1, v{t+3}"); a(f"v_xor_b32 v{t+4}, v{t+4}, v{t+1}"); a(f"v_lshl_add_u32 v{t+4}, v{t+4}, 4, v{t}")
    a("s_and_b32 s46, s21, 1"); a("s_lshl_b32 s47, s46, 1")
    a(f"v_add_u32 v{t+5}, s47, v{t+3}"); a(f"v_xor_b32 v{t+5}, v{t+5}, v{t+1}"); a(f"v_lshl_add_u32 v{t+5}, v{t+5}, 4, v{t}"); a(f"v_lshl_add_u32 v{t+5}, v{t+2}, 3, v{t+5}")
    a("s_mul_i32 s45, s24, 144"); a("s_mul_i32 s47, s23, 9"); a("s_add_u32 s45, s45, s47"); a("s_lshl_b32 s45, s45, 13")
    a("s_cmp_eq_u32 s46, 1"); a("s_cbranch_scc1 {P}HE1")
    for wn in range(2):
        if wn: a.lab("{P}HE1")
        n = 0
        for jp in range(5):
            if jp < 4: j = 2*jp + wn; kk = jp + 5*wn
            else: j = 0 if wn else 8; kk = 4
            a(f"s_add_u32 s47, s45, {kk*8192}")
            for mt in range(4):
                acc = VACC + (mt*9+j)*4; d = VB + 4*(n % 16); n += 1
                a(f"v_cvt_pk_bf16_f32 v{d}, v{acc}, v{acc+1}"); a(f"v_cvt_pk_bf16_f32 v{d+1}, v{acc+2}, v{acc+3}")
                if jp < 4:
                    a(f"v_cvt_pk_bf16_f32 v{d+2}, v{acc+4}, v{acc+5}"); a(f"v_cvt_pk_bf16_f32 v{d+3}, v{acc+6}, v{acc+7}")
                    a("s_nop 1"); a(f"v_permlane16_swap_b32 v{d}, v{d+2}"); a(f"v_permlane16_swap_b32 v{d+1}, v{d+3}")
                    a.vmem(f"buffer_store_dwordx4 v[{d}:{d+3}], v{t+4}, s[40:43], s47 offen offset:{1024*mt}{pol}", 'st')
                else:
                    a.vmem(f"buffer_store_dwordx2 v[{d}:{d+1}], v{t+5}, s[40:43], s47 offen offset:{1024*mt}{pol}", 'st')
        a("s_endpgm")

def h_like_ids(a):
    a("s_and_b32 s18, s2, 7"); a("s_lshr_b32 s19, s2, 3")
    a("s_and_b32 s23, s18, 3"); a("s_lshl_b32 s23, s23, 2"); a("s_and_b32 s24, s19, 3"); a("s_add_u32 s23, s23, s24")
    a("s_lshr_b32 s24, s18, 2"); a("s_lshl_b32 s24, s24, 3"); a("s_lshr_b32 s25, s19, 2"); a("s_add_u32 s24, s24, s25")

def k1(name="k1_kernel", opt=(), grid=512):
    a = Asm(); a.opt = opt
    a(f"s_cmp_ge_u32 s2, 512"); a("s_cbranch_scc1 {P}END"); a(f"v_mov_b32 v{TID}, v0")
    a("s_load_dwordx4 s[4:7], s[0:1], 0")
    a("s_load_dwordx4 s[8:11], s[0:1], 24")
    a("s_load_dwordx2 s[12:13], s[0:1], 40")
    a("s_load_dwordx2 s[14:15], s[0:1], 64")
    a("s_load_dwordx2 s[16:17], s[0:1], 88")
    a(f"v_lshrrev_b32 v{VT}, 6, v{TID}"); a("s_nop 0"); a(f"v_readfirstlane_b32 s21, v{VT}")
    a("s_cmp_ge_u32 s2, 448"); a("s_cbranch_scc1 {P}GATE")
    a("s_cmp_ge_u32 s2, 256"); a("s_cbranch_scc1 {P}QKV")
    h_like_ids(a)
    a("s_mul_i32 s44, s24, 128*1152")
    a("s_mul_i32 s26, s23, 576")
    a("s_waitcnt lgkmcnt(0)")
    srd(a, 28, 4, 0, 2048*576*2); srd(a, 32, 10, 0, 576*4608*2); srd(a, 36, 12, 0, 4608*2); srd(a, 40, 16, WS_H, 2048*4608*2)
    g = Gemm(a, 18, 1152, 4608, 3, 2, 2, 2, 4, True, VACC, VB, VAF, VADDR, 28, 32, 26, 44, 52)
    a("s_and_b32 s27, s21, 1"); a("s_mul_i32 s27, s27, 288"); a("s_add_u32 s27, s27, s26")
    a("s_lshr_b32 s22, s21, 1"); a("s_lshl_b32 s22, s22, 6"); a("s_lshl_b32 s25, s24, 7"); a("s_add_u32 s22, s22, s25")
    a(f"v_bfe_u32 v{VT}, v{TID}, 4, 2"); a(f"v_lshlrev_b32 v{VT}, 3, v{VT}"); a(f"v_add_u32 v{VT}, s27, v{VT}")
    for j in range(9): a.vmem(f"buffer_load_dwordx2 v[{VB+2*j}:{VB+2*j+1}], v{VT}, s[36:39], 0 offen offset:{32*j}", 'bias')
    g.setup(21, VT, TID)
    g.prologue_issue()
    a.wait_vm({'bias'})
    for j in range(9):
        for mt in range(4):
            acc = VACC + (mt*9+j)*4
            a(f"v_lshlrev_b32 v{acc}, 16, v{VB+2*j}"); a(f"v_and_b32 v{acc+1}, 0xffff0000, v{VB+2*j}")
            a(f"v_lshlrev_b32 v{acc+2}, 16, v{VB+2*j+1}"); a(f"v_and_b32 v{acc+3}, 0xffff0000, v{VB+2*j+1}")
    g.run()
    if "noepi" in opt: a("s_endpgm")
    h_epilogue(a, "".join(" " + o[4:].replace("_", " ") for o in opt if o.startswith("pol_")))
    a.lab("{P}QKV"); a.vm = []
    a("s_sub_u32 s18, s2, 256")
    a("s_and_b32 s19, s18, 7"); a("s_lshr_b32 s25, s18, 3")
    a("s_and_b32 s24, s19, 1"); a("s_lshl_b32 s24, s24, 3"); a("s_and_b32 s23, s25, 7"); a("s_add_u32 s24, s24, s23")
    a("s_lshr_b32 s23, s19, 1"); a("s_mul_i32 s23, s23, 3"); a("s_lshr_b32 s25, s25, 3"); a("s_add_u32 s23, s23, s25")
    a("s_lshl_b32 s20, s24, 7"); a("s_mul_i32 s44, s24, 128*1152")
    a("s_lshl_b32 s22, s21, 5"); a("s_add_u32 s22, s22, s20")
    a("s_mul_i32 s26, s23, 288")
    a("s_waitcnt lgkmcnt(0)")
    srd(a, 28, 4, 0, 2048*576*2); srd(a, 32, 6, 0, 576*1728*2)
    srd(a, 36, 16, WS_QF, 32*QH); srd(a, 40, 16, WS_KV, 32*KH); srd(a, 48, 16, WS_MX, 4096)
    for trans, lab in ((True, "{P}QK"), (False, "{P}V")):
        if trans:
            a("s_cmp_ge_u32 s23, 8"); a("s_cbranch_scc1 {P}V")
        else:
            a.lab("{P}V"); a.vm = []
        g = Gemm(a, 18, 1152, 1728, 4, 3, 4, 1, 2, trans, VACC, VB, VAF, VADDR, 28, 32, 26, 44, 52)
        g.setup(21, VT, TID); g.prologue_issue()
        for i in range(72): a(f"v_mov_b32 v{VACC+i}, 0")
        g.run()
        a("s_lshr_b32 s27, s22, 5")
        if trans:
            a("s_cmp_ge_u32 s23, 4"); a("s_cbranch_scc1 {P}KEPI")
            a("s_mov_b32 s45, 0x3eae1a93")
            for i in range(72): a(f"v_mul_f32 v{VACC+i}, s45, v{VACC+i}")
            for isk in (0, 1):
                if isk:
                    a("s_endpgm"); a.lab("{P}KEPI")
                    a(f"v_mov_b32 v160, 0")
                    for i in range(0, 72, 2): a(f"v_max3_f32 v160, |v{VACC+i}|, |v{VACC+i+1}|, v160")
                HS = KH if isk else QH; TS = KT if isk else QT; sr = 40 if isk else 36
                a("s_and_b32 s46, s23, 3"); a(f"s_mul_i32 s46, s46, {8*HS}"); a(f"s_mul_i32 s47, s27, {TS}"); a("s_add_u32 s46, s46, s47")
                a("v_and_b32 v146, 15, v230"); a("v_bfe_u32 v147, v230, 4, 2"); a("v_lshlrev_b32 v147, 2, v147")
                a(f"s_mov_b32 s47, {HS}")
                for j in range(9):
                    for p in range(2):
                        a(f"v_add_u32 v148, {16*j+2*p}, v147")
                        a("v_mul_u32_u24 v149, 57, v148"); a("v_lshrrev_b32 v149, 10, v149")
                        a("v_mul_u32_u24 v150, 18, v149"); a("v_sub_u32 v148, v148, v150")
                        a("v_mul_lo_u32 v149, v149, s47")
                        a("v_lshrrev_b32 v150, 3, v148"); a("v_lshlrev_b32 v150, 9, v150"); a("v_and_b32 v151, 7, v148"); a("v_lshl_add_u32 v150, v151, 1, v150")
                        a("v_cmp_gt_u32 vcc, 16, v148")
                        a("v_mov_b32 v151, 4"); a("v_mov_b32 v152, 16"); a("v_cndmask_b32 v151, v151, v152, vcc")
                        a("v_mad_u32_u24 v149, v146, v151, v149"); a("v_add_u32 v149, v149, v150")
                        a("v_lshl_add_u32 v150, v151, 4, v149")
                        for mt in range(2):
                            acc = VACC + (mt*9+j)*4 + 2*p
                            a(f"v_cvt_pk_bf16_f32 v{153+mt}, v{acc}, v{acc+1}")
                            a.vmem(f"buffer_store_dword v{153+mt}, v{149+mt}, s[{sr}:{sr+3}], s46 offen", 'st')
                if isk:
                    wave_max(a, 160, 161)
                    a("s_lshl_b32 s46, s23, 8"); a("s_lshl_b32 s47, s27, 2"); a("s_add_u32 s46, s46, s47"); a("s_sub_u32 s46, s46, 1024")
                    a("v_mov_b32 v146, 0"); a.vmem("buffer_store_dword v160, v146, s[48:51], s46 offen", 'st')
            a("s_endpgm")
        else:
            a(f"v_mov_b32 v160, 0")
            for i in range(0, 72, 2): a(f"v_max3_f32 v160, |v{VACC+i}|, |v{VACC+i+1}|, v160")
            a("s_and_b32 s46, s23, 3"); a(f"s_mul_i32 s46, s46, {8*KH}"); a(f"s_mul_i32 s47, s27, {KT}"); a("s_add_u32 s46, s46, s47"); a("s_add_u32 s46, s46, 1152")
            a("v_and_b32 v146, 15, v230"); a("v_bfe_u32 v147, v230, 4, 1"); a("v_bfe_u32 v148, v230, 5, 1")
            a("v_mul_u32_u24 v147, 304, v147"); a("v_lshl_add_u32 v147, v148, 3, v147")
            a(f"s_mov_b32 s47, {KH}")
            for j in range(9):
                a(f"v_add_u32 v148, {16*j}, v146"); a("v_mul_u32_u24 v149, 57, v148"); a("v_lshrrev_b32 v149, 10, v149")
                a("v_mul_u32_u24 v150, 18, v149"); a("v_sub_u32 v148, v148, v150"); a("v_mul_lo_u32 v149, v149, s47")
                a("v_lshl_add_u32 v149, v148, 4, v149"); a("v_add_u32 v149, v149, v147")
                for mt in range(2):
                    acc = VACC + (mt*9+j)*4; d = 152 + 2*mt
                    a(f"v_cvt_pk_bf16_f32 v{d}, v{acc}, v{acc+1}"); a(f"v_cvt_pk_bf16_f32 v{d+1}, v{acc+2}, v{acc+3}")
                    a.vmem(f"buffer_store_dwordx2 v[{d}:{d+1}], v149, s[40:43], s46 offen offset:{608*mt}", 'st')
                a("s_nop 0")
            a("v_and_b32 v146, 63, v230"); a("v_bfe_u32 v147, v146, 2, 3"); a("v_mul_lo_u32 v147, v147, s47"); a("v_and_b32 v148, 3, v146")
            a("v_mul_u32_u24 v148, 304, v148"); a("v_add_u32 v147, v147, v148"); a("v_add_u32 v147, 288, v147")
            for i in range(4): a(f"v_mov_b32 v{152+i}, 0x3f803f80")
            a.vmem("buffer_store_dwordx4 v[152:155], v147, s[40:43], s46 offen", 'st')
            wave_max(a, 160, 161)
            a("s_lshl_b32 s46, s23, 8"); a("s_lshl_b32 s47, s27, 2"); a("s_add_u32 s46, s46, s47"); a("s_sub_u32 s46, s46, 1024")
            a("v_mov_b32 v146, 0"); a.vmem("buffer_store_dword v160, v146, s[48:51], s46 offen", 'st')
            a("s_endpgm")
    a.lab("{P}GATE"); a.vm = []
    a("s_sub_u32 s18, s2, 448"); a("s_lshl_b32 s18, s18, 5")
    a("s_waitcnt lgkmcnt(0)")
    srd(a, 28, 4, 0, 2048*576*2); srd(a, 32, 14, 0, 1152); srd(a, 36, 16, WS_G, 8192)
    a("v_lshrrev_b32 v146, 3, v230"); a("v_add_u32 v146, s18, v146")
    a("v_and_b32 v147, 7, v230"); a("v_lshlrev_b32 v147, 4, v147")
    a("v_mul_u32_u24 v148, 1152, v146"); a("v_add_u32 v148, v148, v147")
    for i in range(9):
        a.vmem(f"buffer_load_dwordx4 v[{4*i}:{4*i+3}], v148, s[28:31], 0 offen offset:{128*i}", 'x')
        a.vmem(f"buffer_load_dwordx4 v[{36+4*i}:{36+4*i+3}], v147, s[32:35], 0 offen offset:{128*i}", 'x')
    a.wait_vm({'x'})
    a("v_mov_b32 v80, 0"); a("v_mov_b32 v81, 0")
    for i in range(36):
        a(f"v_lshlrev_b32 v72, 16, v{i}"); a(f"v_lshlrev_b32 v73, 16, v{36+i}"); a("v_fmac_f32 v80, v72, v73")
        a(f"v_and_b32 v74, 0xffff0000, v{i}"); a(f"v_and_b32 v75, 0xffff0000, v{36+i}"); a("v_fmac_f32 v81, v74, v75")
    a("v_add_f32 v80, v80, v81")
    for c in ("quad_perm:[1,0,3,2]", "quad_perm:[2,3,0,1]", "row_half_mirror"):
        a("s_nop 1"); a(f"v_add_f32_dpp v80, v80, v80 {c} row_mask:0xf bank_mask:0xf")
    a("v_mul_f32 v80, 0xbfb8aa3b, v80"); a("v_exp_f32 v80, v80"); a("s_nop 0"); a("v_add_f32 v80, 1.0, v80"); a("v_rcp_f32 v80, v80")
    a("v_lshlrev_b32 v146, 2, v146"); a("s_nop 0")
    a.vmem("buffer_store_dword v80, v146, s[36:39], 0 offen", 'st')
    a.lab("{P}END"); a("s_endpgm")
    return name, a.text().replace("{P}", name + "_"), kdesc(name, 232), (grid, 256, 79872)
```

```python
from gen_core import *
from gen_k1 import VACC, VB, VAF, VADDR, VT, TID, h_like_ids, wave_max
CH = 20480
def gemm2(a, pol):
    a("s_and_b32 s18, s2, 7"); a("s_lshr_b32 s19, s2, 3")
    a("s_and_b32 s23, s19, 1"); a("s_lshr_b32 s24, s19, 1")
    a("s_mul_i32 s44, s24, 144"); a("s_mul_i32 s25, s18, 18"); a("s_add_u32 s44, s44, s25"); a("s_lshl_b32 s44, s44, 13")
    a(f"s_mul_i32 s26, s18, {576*1152}"); a("s_mul_i32 s25, s23, 576"); a("s_add_u32 s26, s26, s25")
    a("s_waitcnt lgkmcnt(0)")
    srd(a, 28, 16, WS_H, 2048*4608*2); srd(a, 32, 8, 0, 4608*576*2); srd(a, 40, 16, WS_P, 8*PSZ)
    g = Gemm(a, 18, 0, 576, 3, 2, 2, 2, 4, True, VACC, VB, VAF, VADDR, 28, 32, 26, 44, 52, atiled=True)
    g.setup(21, VT, TID); g.prologue_issue()
    for i in range(144): a(f"v_mov_b32 v{i}, 0")
    g.run()
    a("s_lshr_b32 s45, s21, 1"); a("s_lshl_b32 s45, s45, 2"); a("s_lshl_b32 s46, s24, 3"); a("s_add_u32 s45, s45, s46"); a("s_mul_i32 s45, s45, 36")
    a("s_and_b32 s46, s21, 1"); a("s_mul_i32 s46, s46, 9"); a("s_add_u32 s45, s45, s46"); a("s_mul_i32 s46, s23, 18"); a("s_add_u32 s45, s45, s46")
    a("s_lshl_b32 s45, s45, 9"); a(f"s_mul_i32 s46, s18, {PSZ}"); a("s_add_u32 s45, s45, s46")
    a(f"v_and_b32 v{VT}, 63, v{TID}"); a(f"v_lshlrev_b32 v{VT}, 3, v{VT}")
    n = 0
    for mt in range(4):
        for j in range(9):
            acc = (mt*9+j)*4; d = VB + 2*(n % 30); n += 1
            a(f"v_cvt_pk_bf16_f32 v{d}, v{acc}, v{acc+1}"); a(f"v_cvt_pk_bf16_f32 v{d+1}, v{acc+2}, v{acc+3}")
            if j == 8: a(f"s_add_u32 s46, s45, 4096")
            a.vmem(f"buffer_store_dwordx2 v[{d}:{d+1}], v{VT}, s[40:43], s{46 if j == 8 else 45} offen offset:{512*j if j < 8 else 0}{pol}", 'st')
        a(f"s_add_u32 s45, s45, {36*512}")
    a("s_endpgm")

S = [0, 16]; O = 32; C = 48; P = 64; KL = 72; KH2 = 76; V = 78; QL = 86; QH2 = 90; AK = 92; AK2 = 93; AV = 94; T = 96
def attn(a, pol):
    a("s_sub_u32 s18, s2, 256"); a("s_and_b32 s19, s18, 7"); a("s_lshr_b32 s18, s18, 3")
    a("s_lshl_b32 s19, s19, 2"); a("s_lshr_b32 s20, s18, 4"); a("s_add_u32 s19, s19, s20")
    a("s_and_b32 s18, s18, 15"); a("s_lshl_b32 s18, s18, 2"); a("s_add_u32 s18, s18, s21")
    a("s_waitcnt lgkmcnt(0)")
    srd(a, 28, 16, WS_QF, 32*QH); srd(a, 32, 16, WS_KV, 32*KH); srd(a, 36, 16, WS_MX, 4096); srd(a, 40, 16, WS_O, 2048*576*2)
    a(f"v_and_b32 v{T}, 63, v{TID}"); a(f"v_lshlrev_b32 v{AK}, 4, v{T}")
    a(f"s_mul_i32 s22, s19, {KH}")
    a("s_lshl_b32 s23, s21, 10"); a(f"v_add_u32 v{T+1}, s23, v{AK}")
    def dma(c):
        for r in range(5):
            a(f"s_add_u32 m0, s23, {(c % 3)*CH + r*4096}"); a(f"s_add_u32 s24, s22, {c*CH + r*4096}")
            a.vmem(f"buffer_load_dwordx4 v{T+1}, s[32:35], s24 offen lds", ('C', c))
    dma(0); dma(1)
    a(f"s_mul_i32 s24, s19, {QH}"); a(f"s_mul_i32 s25, s18, {QT}"); a("s_add_u32 s24, s24, s25")
    a(f"v_and_b32 v{T+2}, 31, v{T}"); a(f"v_lshlrev_b32 v{AK2}, 2, v{T+2}"); a(f"v_add_u32 v{AK2}, 1024, v{AK2}")
    a(f"v_mov_b32 v{QH2}, 0"); a(f"v_mov_b32 v{QH2+1}, 0"); a(f"v_mov_b32 v{KH2+1}, 0")
    a.vmem(f"buffer_load_dwordx4 v[{QL}:{QL+3}], v{AK}, s[28:31], s24 offen", 'q')
    a("s_mov_b32 exec_hi, 0"); a.vmem(f"buffer_load_dword v{QH2}, v{AK2}, s[28:31], s24 offen", 'q'); a("s_mov_b64 exec, -1")
    a("s_lshr_b32 s25, s19, 3"); a("s_lshl_b32 s25, s25, 8"); a(f"v_lshlrev_b32 v{T+3}, 2, v{T}")
    a.vmem(f"buffer_load_dword v{T+4}, v{T+3}, s[36:39], s25 offen", 'q')
    a.vmem(f"buffer_load_dword v{T+5}, v{T+3}, s[36:39], s25 offen offset:1024", 'q')
    a(f"v_lshrrev_b32 v{T+3}, 5, v{T}"); a(f"v_mul_u32_u24 v{T+3}, 19, v{T+3}"); a(f"v_add_u32 v{T+3}, v{T+3}, v{T+2}"); a(f"v_lshlrev_b32 v{AV}, 4, v{T+3}"); a(f"v_add_u32 v{AV}, 1152, v{AV}")
    for i in range(16): a(f"v_mov_b32 v{O+i}, 0"); a(f"v_mov_b32 v{C+i}, 0")
    a.wait_vm({'q'})
    a(f"v_max_f32 v{T+4}, v{T+4}, v{T+5}"); wave_max(a, T+4, T+5)
    a(f"v_mov_b32 v{T+6}, 0")
    for r in [QL, QL+1, QL+2, QL+3, QH2]:
        a(f"v_lshlrev_b32 v{T+7}, 16, v{r}"); a(f"v_and_b32 v{T+8}, 0xffff0000, v{r}"); a(f"v_fmac_f32 v{T+6}, v{T+7}, v{T+7}"); a(f"v_fmac_f32 v{T+6}, v{T+8}, v{T+8}")
    a(f"v_mov_b32 v{T+7}, v{T+6}"); a("s_nop 1"); a(f"v_permlane32_swap_b32 v{T+7}, v{T+6}"); a("s_nop 1"); a(f"v_add_f32 v{T+6}, v{T+6}, v{T+7}")
    wave_max(a, T+6, T+7)
    a(f"v_mul_f32 v{T+7}, v{T+4}, v{T+4}"); a(f"v_mul_f32 v{T+7}, v{T+7}, v{T+6}"); a(f"v_mul_f32 v{T+7}, 0x41900000, v{T+7}")
    a(f"v_mov_b32 v{T+8}, 0x45800000"); a(f"v_cmp_le_f32 vcc, v{T+7}, v{T+8}"); a("s_mov_b64 s[46:47], vcc")
    a(f"v_mov_b32 v{T+8}, 0x49800000"); a(f"v_cmp_le_f32 vcc, v{T+4}, v{T+8}"); a("s_nop 4"); a("s_and_b64 s[46:47], s[46:47], vcc")
    a("s_cmp_eq_u64 s[46:47], -1"); a("s_cbranch_scc1 {P}FAST")
    a("s_waitcnt vmcnt(0)") if False else None
    a("s_mov_b32 s25, s22"); a("s_mov_b32 s26, 64"); a(f"v_mov_b32 v{T+6}, 0xff800000"); a(f"v_mov_b32 v{P+5}, 0")
    a.lab("{P}FB")
    a(f"buffer_load_dwordx4 v[{P}:{P+3}], v{AK}, s[32:35], s25 offen"); a(f"buffer_load_dword v{P+4}, v{AK2}, s[32:35], s25 offen")
    a("s_waitcnt vmcnt(0)")
    a(f"v_mfma_f32_32x32x16_bf16 v[0:15], v[{P}:{P+3}], v[{QL}:{QL+3}], 0"); a(f"v_mfma_f32_32x32x8_bf16 v[0:15], v[{P+4}:{P+5}], v[{QH2}:{QH2+1}], v[0:15]")
    a("s_nop 7"); a("s_nop 7"); a("s_nop 3")
    for i in range(0, 16, 2): a(f"v_max3_f32 v{T+6}, v{i}, v{i+1}, v{T+6}")
    a(f"s_add_u32 s25, s25, {KT}"); a("s_sub_u32 s26, s26, 1"); a("s_cmp_lg_u32 s26, 0"); a("s_cbranch_scc1 {P}FB")
    a(f"v_mov_b32 v{T+7}, v{T+6}"); a("s_nop 1"); a(f"v_permlane32_swap_b32 v{T+7}, v{T+6}"); a("s_nop 1"); a(f"v_max_f32 v{T+6}, v{T+6}, v{T+7}")
    for i in range(16): a(f"v_sub_f32 v{C+i}, 0, v{T+6}")
    a.lab("{P}FAST")
    def off(t): return ((t // 8) % 3) * CH + (t % 8) * KT
    def rdK(t):
        a(f"ds_read_b128 v[{KL}:{KL+3}], v{AK} offset:{off(t)}"); a(f"ds_read_b32 v{KH2}, v{AK2} offset:{off(t)}")
    def rdV(t):
        a(f"ds_read_b128 v[{V}:{V+3}], v{AV} offset:{off(t)}"); a(f"ds_read_b128 v[{V+4}:{V+7}], v{AV} offset:{off(t)+608}")
    def smm(t):
        s = S[t % 2]
        a(f"v_mfma_f32_32x32x16_bf16 v[{s}:{s+15}], v[{KL}:{KL+3}], v[{QL}:{QL+3}], v[{C}:{C+15}]")
        a(f"v_mfma_f32_32x32x8_bf16 v[{s}:{s+15}], v[{KH2}:{KH2+1}], v[{QH2}:{QH2+1}], v[{s}:{s+15}]")
    a.wait_vm({('C', 0)}); a("s_barrier")
    rdK(0); a("s_waitcnt lgkmcnt(0)"); smm(0); rdK(1); rdV(0)
    for t in range(64):
        s = S[t % 2]
        if t % 8 == 6 and t + 2 < 64:
            c = t // 8
            a.wait_vm({('C', c + 1)}); a("s_barrier")
            if c + 2 < 8: dma(c + 2)
        if t + 1 < 64:
            a("s_waitcnt lgkmcnt(2)"); smm(t + 1)
            if t + 2 < 64: rdK(t + 2)
        for i in range(16): a(f"v_exp_f32 v{s+i}, v{s+i}")
        for i in range(8): a(f"v_cvt_pk_bf16_f32 v{P+i}, v{s+2*i}, v{s+2*i+1}")
        a(f"s_waitcnt lgkmcnt({2 if t + 2 < 64 else 0})")
        a(f"v_mfma_f32_32x32x16_bf16 v[{O}:{O+15}], v[{V}:{V+3}], v[{P}:{P+3}], v[{O}:{O+15}]")
        a(f"v_mfma_f32_32x32x16_bf16 v[{O}:{O+15}], v[{V+4}:{V+7}], v[{P+4}:{P+7}], v[{O}:{O+15}]")
        if t + 1 < 64: rdV(t + 1)
    a("s_nop 7"); a("s_nop 7"); a("s_nop 3")
    a(f"v_mov_b32 v{T+2}, v{O+10}"); a(f"v_mov_b32 v{T+3}, v{O+10}"); a("s_nop 1"); a(f"v_permlane32_swap_b32 v{T+2}, v{T+3}"); a("s_nop 1")
    a(f"v_rcp_f32 v{T+2}, v{T+2}")
    a(f"v_and_b32 v{T+3}, 15, v{T}"); a(f"v_lshlrev_b32 v{T+3}, 4, v{T+3}")
    a(f"v_bfe_u32 v{T+4}, v{T}, 4, 1"); a(f"s_lshl_b32 s24, s18, 1"); a(f"v_add_u32 v{T+4}, s24, v{T+4}"); a(f"v_mul_u32_u24 v{T+4}, {18*1024}, v{T+4}"); a(f"v_add_u32 v{T+3}, v{T+3}, v{T+4}")
    a("s_mul_i32 s24, s19, 18"); a(f"v_lshrrev_b32 v{T+4}, 5, v{T}"); a(f"v_lshlrev_b32 v{T+4}, 2, v{T+4}"); a(f"v_add_u32 v{T+4}, s24, v{T+4}")
    for p, rho in enumerate([0, 2, 4, 6, 8]):
        dd = 8*(rho//4) + rho % 4
        a(f"v_add_u32 v{T+5}, {dd}, v{T+4}")
        a(f"v_lshrrev_b32 v{T+6}, 3, v{T+5}"); a(f"v_lshlrev_b32 v{T+6}, 8, v{T+6}")
        a(f"v_and_b32 v{T+5}, 7, v{T+5}"); a(f"v_lshl_add_u32 v{T+6}, v{T+5}, 1, v{T+6}"); a(f"v_add_u32 v{T+10+p}, v{T+6}, v{T+3}")
        a(f"v_mul_f32 v{O+rho}, v{O+rho}, v{T+2}"); a(f"v_mul_f32 v{O+rho+1}, v{O+rho+1}, v{T+2}")
        a(f"v_cvt_pk_bf16_f32 v{P+p}, v{O+rho}, v{O+rho+1}")
        if p == 4: a("s_mov_b32 exec_hi, 0")
        a.vmem(f"buffer_store_dword v{P+p}, v{T+10+p}, s[40:43], 0 offen{pol}", 'st')
    a("s_endpgm")

def k2(name="k2_kernel", opt=(), grid=768):
    a = Asm(); a.opt = opt; pol = " sc1"
    a("s_cmp_ge_u32 s2, 768"); a("s_cbranch_scc1 {P}END"); a(f"v_mov_b32 v{TID}, v0")
    a("s_load_dwordx2 s[8:9], s[0:1], 48")
    a("s_load_dwordx2 s[16:17], s[0:1], 88")
    a(f"v_lshrrev_b32 v{VT}, 6, v{TID}"); a("s_nop 0"); a(f"v_readfirstlane_b32 s21, v{VT}")
    a("s_cmp_ge_u32 s2, 256"); a("s_cbranch_scc1 {P}ATT")
    gemm2(a, pol)
    a.lab("{P}ATT"); a.vm = []
    attn(a, "")
    a.lab("{P}END"); a("s_endpgm")
    return name, a.text().replace("{P}", name + "_"), kdesc(name, 232), (grid, 256, 79872)

def k3(name="k3_kernel"):
    a = Asm(); TD = 127
    ACC = 0; B3 = 24; A3 = 36; AD = 68; PR = 80; G = 112; BI = 114; t = 120
    a("s_cmp_ge_u32 s2, 256"); a("s_cbranch_scc1 {P}END"); a(f"v_mov_b32 v{TD}, v0")
    a("s_load_dwordx2 s[8:9], s[0:1], 16")
    a("s_load_dwordx2 s[10:11], s[0:1], 56")
    a("s_load_dwordx2 s[12:13], s[0:1], 72")
    a("s_load_dwordx2 s[16:17], s[0:1], 88")
    a(f"v_lshrrev_b32 v{t}, 6, v{TD}"); a("s_nop 0"); a(f"v_readfirstlane_b32 s21, v{t}")
    a("s_and_b32 s23, s2, 3"); a("s_lshr_b32 s24, s2, 2")
    a("s_mul_i32 s44, s24, 2*18*1024"); a("s_mul_i32 s26, s23, 288")
    a("s_waitcnt lgkmcnt(0)")
    srd(a, 28, 16, WS_O, 2048*576*2); srd(a, 32, 8, 0, 576*576*2); srd(a, 36, 16, WS_P, 8*PSZ); srd(a, 40, 12, 0, 2048*576*2)
    srd(a, 48, 16, WS_G, 8192); srd(a, 56, 10, 0, 1152)
    g = Gemm(a, 18, 0, 576, 5, 4, 1, 1, 2, True, ACC, B3, A3, AD, 28, 32, 26, 44, 52, adirect=True)
    a(f"v_and_b32 v{t}, 63, v{TD}"); a(f"v_lshlrev_b32 v{AD+5}, 4, v{t}"); a(f"v_add_u32 v{AD+6}, {18*1024}, v{AD+5}")
    g.setup(21, t+1, TD); g.prologue_issue()
    for i in range(24): a(f"v_mov_b32 v{i}, 0")
    a("s_mul_i32 s45, s24, 72"); a("s_mul_i32 s46, s23, 9"); a("s_add_u32 s45, s45, s46"); a("s_mul_i32 s46, s21, 3"); a("s_add_u32 s45, s45, s46"); a("s_lshl_b32 s45, s45, 9")
    a(f"v_lshlrev_b32 v{t+1}, 3, v{t}")
    PRB = 128
    for sp in range(8):
        for mt in range(2):
            a(f"s_add_u32 s46, s45, {sp*PSZ + mt*36*512}")
            for j in range(3):
                r = PRB + ((mt*3+j)*8 + sp)*2
                a.vmem(f"buffer_load_dwordx2 v[{r}:{r+1}], v{t+1}, s[36:39], s46 offen offset:{512*j}", 'p')
    a(f"v_and_b32 v{t+2}, 15, v{t}"); a("s_lshl_b32 s46, s24, 5"); a(f"v_add_u32 v{t+2}, s46, v{t+2}"); a(f"v_lshlrev_b32 v{t+3}, 2, v{t+2}")
    a.vmem(f"buffer_load_dword v{G}, v{t+3}, s[48:51], 0 offen", 'p'); a.vmem(f"buffer_load_dword v{G+1}, v{t+3}, s[48:51], 0 offen offset:64", 'p')
    a("s_mul_i32 s46, s21, 96"); a("s_add_u32 s47, s46, s23") ; a("s_mul_i32 s47, s23, 288"); a("s_add_u32 s47, s47, s46")
    a(f"v_lshrrev_b32 v{t+3}, 4, v{t}"); a(f"v_lshlrev_b32 v{t+3}, 3, v{t+3}"); a(f"v_add_u32 v{t+3}, s47, v{t+3}")
    for j in range(3): a.vmem(f"buffer_load_dwordx2 v[{BI+2*j}:{BI+2*j+1}], v{t+3}, s[56:59], 0 offen offset:{32*j}", 'p')
    a(f"v_mul_u32_u24 v{AD+9}, 1152, v{t+2}"); a(f"v_add_u32 v{AD+9}, v{AD+9}, v{t+3}"); a(f"v_add_u32 v{AD+10}, {16*1152}, v{AD+9}")
    g.run()
    a.wait_vm({'p'})
    for mt in range(2):
        a(f"v_sub_f32 v{t+4}, 1.0, v{G+mt}")
        for j in range(3):
            acc = (mt*3+j)*4; x = t+5
            s0 = B3
            a(f"v_lshlrev_b32 v{s0}, 16, v{BI+2*j}"); a(f"v_and_b32 v{s0+1}, 0xffff0000, v{BI+2*j}"); a(f"v_lshlrev_b32 v{s0+2}, 16, v{BI+2*j+1}"); a(f"v_and_b32 v{s0+3}, 0xffff0000, v{BI+2*j+1}")
            for sp in range(8):
                r = PRB + ((mt*3+j)*8 + sp)*2
                a(f"v_lshlrev_b32 v{s0+4}, 16, v{r}"); a(f"v_and_b32 v{s0+5}, 0xffff0000, v{r}"); a(f"v_lshlrev_b32 v{s0+6}, 16, v{r+1}"); a(f"v_and_b32 v{s0+7}, 0xffff0000, v{r+1}")
                a(f"v_pk_add_f32 v[{s0}:{s0+1}], v[{s0}:{s0+1}], v[{s0+4}:{s0+5}]"); a(f"v_pk_add_f32 v[{s0+2}:{s0+3}], v[{s0+2}:{s0+3}], v[{s0+6}:{s0+7}]")
            for r in range(4):
                a(f"v_mul_f32 v{s0+r}, v{t+4}, v{s0+r}"); a(f"v_fmac_f32 v{s0+r}, v{G+mt}, v{acc+r}")
            d = A3 + 2*(mt*3+j)
            a(f"v_cvt_pk_bf16_f32 v{d}, v{s0}, v{s0+1}"); a(f"v_cvt_pk_bf16_f32 v{d+1}, v{s0+2}, v{s0+3}")
            a.vmem(f"buffer_store_dwordx2 v[{d}:{d+1}], v{AD+9+mt}, s[40:43], 0 offen offset:{32*j}", 'st')
    a.lab("{P}END"); a("s_endpgm")
    return name, a.text().replace("{P}", name + "_"), kdesc(name, 224), (256, 192, 5*9216)
def kernels(): return [k2(), k3()]
```

```python
import sys
from gen_core import *
import gen_k1
ks = [gen_k1.k1(opt=("pol_sc1", "notouch"))]
try:
    import gen_k2; ks += gen_k2.kernels()
except ImportError: pass
hdr = open(f"cdna_kernels/{NAME}.s.ref").read().split("; Override")[0]
out = hdr + "".join(f"; @launch kernel={n} grid=({g},1,1) block=({b},1,1) lds={l}\n" for n, _, _, (g, b, l) in ks)
out += '.amdgcn_target "amdgcn-amd-amdhsa--gfx950"\n.text\n' + "".join(khead(n) + t for n, t, _, _ in ks) + '.section .rodata,"a"\n' + "".join(d for _, _, d, _ in ks)
open(sys.argv[1], "w").write(out)
```

```python
NAME = "gated_mix__softmax_full_mha__dense_activation_squared_relu__prompt"
WS_H   = 0
WS_QF  = 0x1200000
QT = 1152; QH = 64*QT
WS_KV  = WS_QF + 32*QH
KT = 2560; KH = 64*KT
WS_MX  = WS_KV + 32*KH
WS_G   = WS_MX + 4096
WS_O   = WS_G + 8192
WS_P   = WS_O + 2048*576*2
PSZ = 2048*576*2

class Asm:
    def __init__(s): s.l = []; s.vm = []
    def __call__(s, t): s.l.append("  " + t)
    def lab(s, t): s.l.append(t + ":")
    def c(s, t): s.l.append("  ; " + t)
    def vmem(s, t, tag): s.l.append("  " + t); s.vm.append(tag)
    def wait_vm(s, tags):
        idx = [i for i, t in enumerate(s.vm) if t in tags]
        if not idx: return
        n = len(s.vm) - 1 - max(idx)
        n = min(n, 63)
        s.l.append(f"  s_waitcnt vmcnt({n})")
        s.vm = s.vm[len(s.vm) - n:] if n else []
    def text(s): return "\n".join(s.l) + "\n"

def srd(a, d, base, off, size):
    if off:
        a(f"s_add_u32 s{d}, s{base}, {off}")
        a(f"s_addc_u32 s{d+1}, s{base+1}, 0")
    else:
        a(f"s_mov_b32 s{d}, s{base}"); a(f"s_mov_b32 s{d+1}, s{base+1}")
    a(f"s_mov_b32 s{d+2}, {size}")
    a(f"s_mov_b32 s{d+3}, 0x20000")

def kdesc(name, vg, sg=96, acc=0):
    vg4 = (vg + 3) // 4 * 4
    if acc: vg = vg4 + acc
    return f""".p2align 6
.amdhsa_kernel {name}
  .amdhsa_next_free_vgpr {vg}
  .amdhsa_next_free_sgpr {sg}
  .amdhsa_accum_offset {vg4}
  .amdhsa_group_segment_fixed_size 0
  .amdhsa_kernarg_size 96
  .amdhsa_user_sgpr_count 2
  .amdhsa_user_sgpr_kernarg_segment_ptr 1
  .amdhsa_system_sgpr_workgroup_id_x 1
.end_amdhsa_kernel
"""
def khead(name):
    return f".globl {name}\n.p2align 8\n.type {name},@function\n{name}:\n"

STG = 9216

class Gemm:
    def __init__(s, a, nsteps, lda, ldb, R, PD, WM, WN, MT, trans, vacc, vB, vA, vaddr, sA, sB, sBk, sAk, sM0, adirect=False, atiled=False, acca=False):
        s.__dict__.update(locals()); del s.__dict__['s']
        s.NT = 3 if adirect else 9
        s.NW = 3 if adirect else 4
        s.BM = WM * MT * 16
        s.ASZ = 0 if adirect else s.BM * 64
        s.STG = s.ASZ + WN * 9216
        s.nBch = WN * 576 // s.NW
        s.nBi = (s.nBch + 63) // 64
        s.nAi = 0 if adirect else s.BM * 4 // 4 // 64
        s.lg = []
        s.opt = getattr(a, 'opt', ())
    def setup(s, sw, vt, vtid):
        a = s.a; va = s.vaddr; m = s.sM0
        a(f"v_and_b32 v{vt}, 63, v{vtid}")
        a(f"s_mul_i32 s{m}, s{sw}, {s.nBch}")
        for i in range(s.nBi):
            q = vt + 1; rho = vt + 2; cc = vt + 3; k = vt + 4
            a(f"v_add_u32 v{q}, s{m}, v{vt}")
            if i: a(f"v_add_u32 v{q}, {64*i}, v{q}")
            a(f"v_min_u32 v{q}, {s.WN*576-1}, v{q}")
            if s.WN == 2:
                a(f"v_cmp_le_u32 vcc, 576, v{q}"); a(f"v_mov_b32 v{cc}, 0"); a(f"v_mov_b32 v{k}, 576")
                a(f"v_cndmask_b32 v{k}, v{cc}, v{k}, vcc"); a(f"v_sub_u32 v{q}, v{q}, v{k}"); a(f"v_lshrrev_b32 v{va+i}, 1, v{k}")
            a(f"v_mul_u32_u24 v{rho}, 3641, v{q}"); a(f"v_lshrrev_b32 v{rho}, 16, v{rho}")
            a(f"v_mul_u32_u24 v{cc}, 18, v{rho}"); a(f"v_sub_u32 v{cc}, v{q}, v{cc}")
            a(f"v_bfe_u32 v{k}, v{rho}, 2, 2"); a(f"v_lshlrev_b32 v{k}, 3, v{k}"); a(f"v_and_b32 v{q}, 3, v{rho}"); a(f"v_add_u32 v{k}, v{k}, v{q}")
            a(f"v_lshrrev_b32 v{q}, 4, v{rho}"); a(f"v_lshl_add_u32 v{k}, v{q}, 2, v{k}")
            a(f"v_mul_u32_u24 v{k}, {s.ldb*2}, v{k}"); a(f"v_lshl_add_u32 v{k}, v{cc}, 4, v{k}")
            if s.WN == 2: a(f"v_add_u32 v{k}, v{k}, v{va+i}")
            if i % 4: a(f"v_subrev_u32 v{va+i}, {1024*(i%4)}, v{k}")
            else: a(f"v_mov_b32 v{va+i}, v{k}")
        a(f"s_lshl_b32 s{m}, s{m}, 4"); a(f"s_add_u32 s{m}, s{m}, {s.ASZ}")
        a(f"v_lshrrev_b32 v{vt+1}, 2, v{vt}"); a(f"v_mul_u32_u24 v{vt+1}, 288, v{vt+1}"); a(f"v_and_b32 v{vt+2}, 3, v{vt}")
        a(f"v_lshl_add_u32 v{va+7}, v{vt+2}, 3, v{vt+1}")
        if s.adirect: a(f"s_mul_i32 s{m+2}, s{sw}, 96")
        elif s.WN == 2: a(f"s_and_b32 s{m+2}, s{sw}, 1"); a(f"s_mul_i32 s{m+2}, s{m+2}, 9216"); a(f"s_add_u32 s{m+2}, s{m+2}, {s.ASZ}")
        else: a(f"s_mov_b32 s{m+2}, {s.ASZ}")
        a(f"v_add_u32 v{va+7}, s{m+2}, v{va+7}")
        if not s.adirect:
            a(f"s_mul_i32 s{m+1}, s{sw}, {s.nAi*64}")
            for i in range(s.nAi):
                a(f"v_add_u32 v{vt+1}, s{m+1}, v{vt}")
                if i: a(f"v_add_u32 v{vt+1}, {64*i}, v{vt+1}")
                if s.atiled:
                    a(f"v_lshlrev_b32 v{vt+2}, 4, v{vt+1}")
                    if i: a(f"v_subrev_u32 v{va+5+i}, {1024*i}, v{vt+2}")
                    else: a(f"v_mov_b32 v{va+5}, v{vt+2}")
                    continue
                a(f"v_lshrrev_b32 v{vt+2}, 2, v{vt+1}"); a(f"v_bfe_u32 v{vt+3}, v{vt+2}, 3, 1"); a(f"v_mul_u32_u24 v{vt+3}, 3, v{vt+3}")
                a(f"v_and_b32 v{vt+1}, 3, v{vt+1}"); a(f"v_xor_b32 v{vt+1}, v{vt+1}, v{vt+3}")
                a(f"v_mul_u32_u24 v{vt+2}, {s.lda}, v{vt+2}"); a(f"v_lshl_add_u32 v{vt+2}, v{vt+1}, 4, v{vt+2}")
                if i: a(f"v_subrev_u32 v{va+5+i}, {1024*i}, v{vt+2}")
                else: a(f"v_mov_b32 v{va+5}, v{vt+2}")
            a(f"s_lshl_b32 s{m+1}, s{m+1}, 4")
            a(f"v_and_b32 v{vt+1}, 15, v{vt}"); a(f"v_bfe_u32 v{vt+2}, v{vt}, 3, 1"); a(f"v_mul_u32_u24 v{vt+2}, 3, v{vt+2}")
            a(f"v_lshrrev_b32 v{vt+3}, 4, v{vt}"); a(f"v_xor_b32 v{vt+2}, v{vt+2}, v{vt+3}"); a(f"v_lshlrev_b32 v{vt+2}, 4, v{vt+2}")
            a(f"v_lshl_add_u32 v{va+8}, v{vt+1}, 6, v{vt+2}")
            a(f"s_lshr_b32 s{m+2}, s{sw}, {1 if s.WN == 2 else 0}"); a(f"s_mul_i32 s{m+2}, s{m+2}, {s.MT*1024}")
            a(f"v_add_u32 v{va+8}, s{m+2}, v{va+8}")
    def issue(s, st, stA=None):
        L = []
        if st < s.nsteps and 'nob' not in s.opt:
            slot = st % s.R
            rem = s.nBch - 64 * (s.nBi - 1)
            for i in range(s.nBi):
                G = []
                if i % 4 == 0: G += [('s', f"s_add_u32 m0, s{s.sM0}, {slot*s.STG + 1024*i}", None), ('s', "s_nop 0", None)]
                part = (i == s.nBi - 1 and rem < 64)
                if part: G.append(('s', "s_mov_b32 exec_hi, 0" if rem == 32 else f"s_mov_b64 exec, {hex((1 << rem) - 1)}", None))
                G.append(('v', f"buffer_load_dwordx4 v{s.vaddr+i}, s[{s.sB}:{s.sB+3}], s{s.sBk} offen offset:{1024*(i%4)} lds", ('S', st)))
                if part: G.append(('s', "s_mov_b64 exec, -1", None))
                if i == s.nBi - 1: G.append(('s', f"s_add_u32 s{s.sBk}, s{s.sBk}, {s.ldb*64}", None))
                L.append(G)
        if st < s.nsteps and not s.adirect and 'noa' not in s.opt:
            slot = st % s.R
            for i in range(s.nAi):
                G = []
                if i == 0: G += [('s', f"s_add_u32 m0, s{s.sM0+1}, {slot*s.STG}", None), ('s', "s_nop 0", None)]
                G.append(('v', f"buffer_load_dwordx4 v{s.vaddr+5+i}, s[{s.sA}:{s.sA+3}], s{s.sAk} offen offset:{1024*i} lds", ('S', st)))
                if i == s.nAi - 1: G.append(('s', f"s_add_u32 s{s.sAk}, s{s.sAk}, {8192 if s.atiled else 64}", None))
                L.append(G)
        if s.adirect and stA is not None and 0 <= stA < s.nsteps:
            for mt in range(s.MT):
                r = s.vA + (stA % s.PD) * 8 + mt * 4
                L.append([('v', f"buffer_load_dwordx4 v[{r}:{r+3}], v{s.vaddr+5+mt}, s[{s.sA}:{s.sA+3}], s{s.sAk} offen", ('A', stA))] + ([('s', f"s_add_u32 s{s.sAk}, s{s.sAk}, 1024", None)] if mt == s.MT - 1 else []))
        return L
    def emit(s, L):
        for G in L:
            for k, t, tag in G:
                if k == 'v': s.a.vmem(t, tag)
                else: s.a(t)
    def ds(s, t, tag):
        if 'nolds' in s.opt: return
        s.a(t); s.lg.append(tag)
    def wait_lg(s, tags):
        idx = [i for i, t in enumerate(s.lg) if t in tags]
        if not idx: return
        n = min(len(s.lg) - 1 - max(idx), 15)
        s.a(f"s_waitcnt lgkmcnt({n})")
        s.lg = s.lg[len(s.lg) - n:] if n else []
    def readsB(s, st, j):
        r = s.vB + 4 * j; o = (st % s.R) * s.STG + 32 * j
        s.ds(f"ds_read_b64_tr_b16 v[{r}:{r+1}], v{s.vaddr+7} offset:{o}", ('B', st, j))
        s.ds(f"ds_read_b64_tr_b16 v[{r+2}:{r+3}], v{s.vaddr+7} offset:{o+4608}", ('B', st, j))
    def readsA(s, st):
        if s.adirect: return
        for mt in range(s.MT):
            r = s.vA + (st % 2) * s.MT * 4 + mt * 4
            s.ds(f"ds_read_b128 v[{r}:{r+3}], v{s.vaddr+8} offset:{(st % s.R) * s.STG + mt * 1024}", ('A', st))
    def prologue_issue(s):
        for st in range(s.PD): s.emit(s.issue(st, st - 1))
    def run(s):
        a = s.a; NT = s.NT; PD = s.PD
        rep = [o for o in s.opt if o.startswith('rep')]
        if rep: a(f"s_mov_b32 s60, {rep[0][3:]}"); a.lab("{P}REP")
        a.wait_vm({('S', 0)}); a("s_barrier")
        stamp(a, 1)
        s.readsA(0)
        for j in range(NT): s.readsB(0, j)
        for st in range(s.nsteps):
            a.c(f"---- step {st}")
            more = st + 1 < s.nsteps
            need = {('A', st)}
            if more: need.add(('S', st + 1))
            a.wait_vm(need)
            if s.PD == s.R and s.lg: a("s_waitcnt lgkmcnt(0)"); s.lg = []
            if more or s.PD == s.R: a("s_barrier")
            L = s.issue(st + PD, st + PD - 1)
            nper = (len(L) + NT - 1) // NT
            if more: s.readsA(st + 1)
            for j in range(NT):
                s.wait_lg({('B', st, j), ('A', st)})
                for mt in range(s.MT):
                    acc = s.vacc + (mt * NT + j) * 4
                    ra = s.vA + ((st % PD) * 8 if s.adirect else (st % 2) * s.MT * 4) + mt * 4
                    rb = s.vB + 4 * j
                    x, y = (rb, ra) if s.trans else (ra, rb)
                    c = "a" if s.acca else "v"
                    a(f"v_mfma_f32_16x16x32_bf16 {c}[{acc}:{acc+3}], v[{x}:{x+3}], v[{y}:{y+3}], {c}[{acc}:{acc+3}]")
                    if mt == 0: s.emit(L[:nper]); L = L[nper:]
                if more: s.readsB(st + 1, j)
            s.emit(L)
        if rep:
            a("s_sub_u32 s60, s60, 1"); a("s_cmp_lg_u32 s60, 0"); a("s_cbranch_scc1 {P}REP"); a.opt = tuple(o for o in a.opt if not o.startswith('rep'))
        a("s_nop 7"); a("s_nop 1"); stamp(a, 2)

def touch_lin(a, sr, vtid, vt, sbase, n, stmp, vdummy):
    a(f"v_lshlrev_b32 v{vt}, 6, v{vtid}")
    for i in range(n):
        if i: a(f"s_add_u32 s{stmp}, s{sbase}, {16384*i}")
        a.vmem(f"buffer_load_dword v{vdummy}, v{vt}, s[{sr}:{sr+3}], s{stmp if i else sbase} offen", 'touch')
def touch_rows(a, sr, vtid, vt, sbase, rows, segs, ld, vdummy):
    n = (rows*segs + 255) // 256
    m = (65536 + segs - 1) // segs
    for i in range(n):
        a(f"v_add_u32 v{vt}, {256*i}, v{vtid}"); a(f"v_min_u32 v{vt}, {rows*segs-1}, v{vt}")
        a(f"v_mul_u32_u24 v{vt+1}, {m}, v{vt}"); a(f"v_lshrrev_b32 v{vt+1}, 16, v{vt+1}")
        a(f"v_mul_u32_u24 v{vt+2}, {segs}, v{vt+1}"); a(f"v_sub_u32 v{vt}, v{vt}, v{vt+2}")
        a(f"v_mul_u32_u24 v{vt+1}, {ld}, v{vt+1}"); a(f"v_lshl_add_u32 v{vt}, v{vt}, 6, v{vt+1}")
        a.vmem(f"buffer_load_dword v{vdummy}, v{vt}, s[{sr}:{sr+3}], s{sbase} offen", 'touch')
    for idx in range(rows*segs): assert (idx*m) >> 16 == idx // segs

def stamp(a, i):
    if "prof" in a.opt: a(f"s_memtime s[{70+2*i}:{71+2*i}]")
def stamp_out(a, n, wg, vt, slot0=0):
    if "prof" not in a.opt: return
    a("s_waitcnt vmcnt(0) lgkmcnt(0)"); a(f"s_memtime s[{70+2*n}:{71+2*n}]"); a("s_load_dwordx2 s[66:67], s[0:1], 80"); a("s_waitcnt lgkmcnt(0)")
    for k, w in enumerate(wg):
        a(f"s_cmp_lg_u32 s2, {w}"); a(f"s_cbranch_scc1 {{P}}SK{k}_{len(a.l)}"); lab = f"{{P}}SK{k}_{len(a.l)-1}"
        a("s_cmp_lg_u32 s21, 0"); a(f"s_cbranch_scc1 {lab}")
        a("s_mov_b32 s68, 256"); a("s_mov_b32 s69, 0x20000"); a("s_mov_b32 s64, s66"); a("s_mov_b32 s65, s67"); a("s_mov_b32 s66, s68"); a("s_mov_b32 s67, s69")
        for i in range(0, n + 1):
            a(f"v_mov_b32 v{vt}, s{70+2*i}"); a(f"v_mov_b32 v{vt+1}, {((k+slot0)*5+i)*4}"); a("s_nop 4")
            a(f"buffer_store_dword v{vt}, v{vt+1}, s[64:67], 0 offen")
        a.lab(lab)
```

```python
from gen_core import *
VACC=0; VB=144; VAF=180; VADDR=212; VT=221; TID=230
def wave_max(a, v, t):
    for c in ("row_ror:8","row_ror:4","row_ror:2","row_ror:1"):
        a("s_nop 1"); a(f"v_max_f32_dpp v{v}, v{v}, v{v} {c} row_mask:0xf bank_mask:0xf")
    a(f"v_mov_b32 v{t}, v{v}"); a("s_nop 1"); a(f"v_permlane16_swap_b32 v{t}, v{v}"); a("s_nop 1"); a(f"v_max_f32 v{v}, v{v}, v{t}")
    a(f"v_mov_b32 v{t}, v{v}"); a("s_nop 1"); a(f"v_permlane32_swap_b32 v{t}, v{v}"); a("s_nop 1"); a(f"v_max_f32 v{v}, v{v}, v{t}")

def h_epilogue(a, pol=" sc1"):
    t = VT
    for i in range(144): a(f"v_max_f32 v{i}, 0, v{i}")
    for i in range(0, 144, 2): a(f"v_pk_mul_f32 v[{i}:{i+1}], v[{i}:{i+1}], v[{i}:{i+1}]")
    a(f"v_and_b32 v{t}, 15, v{TID}"); a(f"v_bfe_u32 v{t+1}, v{TID}, 3, 1"); a(f"v_mul_u32_u24 v{t+1}, 3, v{t+1}")
    a(f"v_bfe_u32 v{t+2}, v{TID}, 4, 1"); a(f"v_bfe_u32 v{t+3}, v{TID}, 5, 1")
    a(f"s_lshr_b32 s45, s21, 1"); a("s_lshl_b32 s45, s45, 12")
    a(f"v_lshlrev_b32 v{t}, 6, v{t}"); a(f"v_add_u32 v{t}, s45, v{t}")
    a(f"v_lshl_add_u32 v{t+4}, v{t+2}, 1, v{t+3}"); a(f"v_xor_b32 v{t+4}, v{t+4}, v{t+1}"); a(f"v_lshl_add_u32 v{t+4}, v{t+4}, 4, v{t}")
    a("s_and_b32 s46, s21, 1"); a("s_lshl_b32 s47, s46, 1")
    a(f"v_add_u32 v{t+5}, s47, v{t+3}"); a(f"v_xor_b32 v{t+5}, v{t+5}, v{t+1}"); a(f"v_lshl_add_u32 v{t+5}, v{t+5}, 4, v{t}"); a(f"v_lshl_add_u32 v{t+5}, v{t+2}, 3, v{t+5}")
    a("s_mul_i32 s45, s24, 144"); a("s_mul_i32 s47, s23, 9"); a("s_add_u32 s45, s45, s47"); a("s_lshl_b32 s45, s45, 13")
    a("s_cmp_eq_u32 s46, 1"); a("s_cbranch_scc1 {P}HE1")
    for wn in range(2):
        if wn: a.lab("{P}HE1")
        n = 0
        for jp in range(5):
            if jp < 4: j = 2*jp + wn; kk = jp + 5*wn
            else: j = 0 if wn else 8; kk = 4
            a(f"s_add_u32 s47, s45, {kk*8192}")
            for mt in range(4):
                acc = VACC + (mt*9+j)*4; d = VB + 4*(n % 16); n += 1
                a(f"v_cvt_pk_bf16_f32 v{d}, v{acc}, v{acc+1}"); a(f"v_cvt_pk_bf16_f32 v{d+1}, v{acc+2}, v{acc+3}")
                if jp < 4:
                    a(f"v_cvt_pk_bf16_f32 v{d+2}, v{acc+4}, v{acc+5}"); a(f"v_cvt_pk_bf16_f32 v{d+3}, v{acc+6}, v{acc+7}")
                    a("s_nop 1"); a(f"v_permlane16_swap_b32 v{d}, v{d+2}"); a(f"v_permlane16_swap_b32 v{d+1}, v{d+3}")
                    a.vmem(f"buffer_store_dwordx4 v[{d}:{d+3}], v{t+4}, s[40:43], s47 offen offset:{1024*mt}{pol}", 'st')
                else:
                    a.vmem(f"buffer_store_dwordx2 v[{d}:{d+1}], v{t+5}, s[40:43], s47 offen offset:{1024*mt}{pol}", 'st')
        stamp(a, 3); stamp_out(a, 4, [0, 100, 255] if wn == 0 else [], VT)
        a("s_endpgm")

def h_like_ids(a):
    a("s_and_b32 s18, s2, 7"); a("s_lshr_b32 s19, s2, 3")
    a("s_and_b32 s23, s18, 3"); a("s_lshl_b32 s23, s23, 2"); a("s_and_b32 s24, s19, 3"); a("s_add_u32 s23, s23, s24")
    a("s_lshr_b32 s24, s18, 2"); a("s_lshl_b32 s24, s24, 3"); a("s_lshr_b32 s25, s19, 2"); a("s_add_u32 s24, s24, s25")

def k1(name="k1_kernel", opt=(), grid=512):
    a = Asm(); a.opt = opt
    a(f"s_cmp_ge_u32 s2, 512"); a("s_cbranch_scc1 {P}END"); a(f"v_mov_b32 v{TID}, v0")
    stamp(a, 0)
    a("s_load_dwordx4 s[4:7], s[0:1], 0")
    a("s_load_dwordx4 s[8:11], s[0:1], 24")
    a("s_load_dwordx2 s[12:13], s[0:1], 40")
    a("s_load_dwordx2 s[14:15], s[0:1], 64")
    a("s_load_dwordx2 s[16:17], s[0:1], 88")
    a(f"v_lshrrev_b32 v{VT}, 6, v{TID}"); a("s_nop 0"); a(f"v_readfirstlane_b32 s21, v{VT}")
    a("s_cmp_ge_u32 s2, 448"); a("s_cbranch_scc1 {P}GATE")
    a("s_cmp_ge_u32 s2, 256"); a("s_cbranch_scc1 {P}QKV")
    h_like_ids(a)
    a("s_mul_i32 s44, s24, 128*1152")
    a("s_mul_i32 s26, s23, 576")
    a("s_waitcnt lgkmcnt(0)")
    srd(a, 28, 4, 0, 2048*576*2); srd(a, 32, 10, 0, 576*4608*2); srd(a, 36, 12, 0, 4608*2); srd(a, 40, 16, WS_H, 2048*4608*2)
    g = Gemm(a, 18, 1152, 4608, 3, 2 if 'pd2' in opt else 3, 2, 2, 4, True, VACC, VB, VAF, VADDR, 28, 32, 26, 44, 52)
    a("s_and_b32 s27, s21, 1"); a("s_mul_i32 s27, s27, 288"); a("s_add_u32 s27, s27, s26")
    a("s_lshr_b32 s22, s21, 1"); a("s_lshl_b32 s22, s22, 6"); a("s_lshl_b32 s25, s24, 7"); a("s_add_u32 s22, s22, s25")
    a(f"v_bfe_u32 v{VT}, v{TID}, 4, 2"); a(f"v_lshlrev_b32 v{VT}, 3, v{VT}"); a(f"v_add_u32 v{VT}, s27, v{VT}")
    for j in range(9): a.vmem(f"buffer_load_dwordx2 v[{VB+2*j}:{VB+2*j+1}], v{VT}, s[36:39], 0 offen offset:{32*j}", 'bias')
    a("s_mov_b32 s56, s44")
    g.setup(21, VT, TID)
    g.prologue_issue()
    if "notouch" not in opt:
        a("s_and_b32 s57, s23, 3"); a("s_mul_i32 s57, s57, 36864"); a("s_add_u32 s56, s56, s57"); touch_lin(a, 28, TID, VT, 56, 3, 59, 229)
        a("s_and_b32 s57, s24, 7"); a(f"s_mul_i32 s57, s57, {72*9216}"); a("s_mul_i32 s58, s23, 576"); a("s_add_u32 s57, s57, s58"); touch_rows(a, 32, TID, VT, 57, 72, 9, 9216, 229)
    a.wait_vm({'bias'})
    for j in range(9):
        for mt in range(4):
            acc = VACC + (mt*9+j)*4
            a(f"v_lshlrev_b32 v{acc}, 16, v{VB+2*j}"); a(f"v_and_b32 v{acc+1}, 0xffff0000, v{VB+2*j}")
            a(f"v_lshlrev_b32 v{acc+2}, 16, v{VB+2*j+1}"); a(f"v_and_b32 v{acc+3}, 0xffff0000, v{VB+2*j+1}")
    g.run()
    if "noepi" in opt: a("s_endpgm")
    h_epilogue(a, "".join(" " + o[4:].replace("_", " ") for o in opt if o.startswith("pol_")))
    a.lab("{P}QKV"); a.vm = []
    a("s_sub_u32 s18, s2, 256")
    a("s_and_b32 s19, s18, 7"); a("s_lshr_b32 s25, s18, 3")
    a("s_lshr_b32 s24, s19, 2"); a("s_lshl_b32 s24, s24, 3"); a("s_and_b32 s23, s25, 7"); a("s_add_u32 s24, s24, s23")
    a("s_and_b32 s23, s19, 3"); a("s_mul_i32 s23, s23, 3"); a("s_lshr_b32 s25, s25, 3"); a("s_add_u32 s23, s23, s25")
    a("s_lshl_b32 s20, s24, 7"); a("s_mul_i32 s44, s24, 128*1152")
    a("s_lshl_b32 s22, s21, 5"); a("s_add_u32 s22, s22, s20")
    a("s_mul_i32 s26, s23, 288")
    a("s_waitcnt lgkmcnt(0)")
    srd(a, 28, 4, 0, 2048*576*2); srd(a, 32, 6, 0, 576*1728*2)
    srd(a, 36, 16, WS_QF, 32*QH); srd(a, 40, 16, WS_KV, 32*KH); srd(a, 48, 16, WS_MX, 4096)
    for trans, lab in ((True, "{P}QK"), (False, "{P}V")):
        if trans:
            a("s_cmp_ge_u32 s23, 8"); a("s_cbranch_scc1 {P}V")
        else:
            a.lab("{P}V"); a.vm = []
        g = Gemm(a, 18, 1152, 1728, 4, 3 if 'pd2' in opt else 4, 4, 1, 2, trans, VACC, VB, VAF, VADDR, 28, 32, 26, 44, 52)
        g.setup(21, VT, TID); g.prologue_issue()
        if "notouch" not in opt:
            a("s_and_b32 s57, s24, 7"); a(f"s_mul_i32 s57, s57, {72*3456}"); a("s_mul_i32 s58, s23, 288"); a("s_add_u32 s57, s57, s58"); touch_rows(a, 32, TID, VT, 57, 72, 5, 3456, 229)
        for i in range(72): a(f"v_mov_b32 v{VACC+i}, 0")
        g.run()
        a("s_lshr_b32 s27, s22, 5")
        if trans:
            a("s_cmp_ge_u32 s23, 4"); a("s_cbranch_scc1 {P}KEPI")
            a("s_mov_b32 s45, 0x3eae1a93")
            for i in range(72): a(f"v_mul_f32 v{VACC+i}, s45, v{VACC+i}")
            for isk in (0, 1):
                if isk:
                    a("s_endpgm"); a.lab("{P}KEPI")
                    a(f"v_mov_b32 v160, 0")
                    for i in range(0, 72, 2): a(f"v_max3_f32 v160, |v{VACC+i}|, |v{VACC+i+1}|, v160")
                HS = KH if isk else QH; TS = KT if isk else QT; sr = 40 if isk else 36
                a("s_and_b32 s46, s23, 3"); a(f"s_mul_i32 s46, s46, {8*HS}"); a(f"s_mul_i32 s47, s27, {TS}"); a("s_add_u32 s46, s46, s47")
                a("v_and_b32 v146, 15, v230"); a("v_bfe_u32 v147, v230, 4, 2"); a("v_lshlrev_b32 v147, 2, v147")
                a(f"s_mov_b32 s47, {HS}")
                for j in range(9):
                    for p in range(2):
                        a(f"v_add_u32 v148, {16*j+2*p}, v147")
                        a("v_mul_u32_u24 v149, 57, v148"); a("v_lshrrev_b32 v149, 10, v149")
                        a("v_mul_u32_u24 v150, 18, v149"); a("v_sub_u32 v148, v148, v150")
                        a("v_mul_lo_u32 v149, v149, s47")
                        a("v_lshrrev_b32 v150, 3, v148"); a("v_lshlrev_b32 v150, 9, v150"); a("v_and_b32 v151, 7, v148"); a("v_lshl_add_u32 v150, v151, 1, v150")
                        a("v_cmp_gt_u32 vcc, 16, v148")
                        a("v_mov_b32 v151, 4"); a("v_mov_b32 v152, 16"); a("v_cndmask_b32 v151, v151, v152, vcc")
                        a("v_mad_u32_u24 v149, v146, v151, v149"); a("v_add_u32 v149, v149, v150")
                        a("v_lshl_add_u32 v150, v151, 4, v149")
                        for mt in range(2):
                            acc = VACC + (mt*9+j)*4 + 2*p
                            a(f"v_cvt_pk_bf16_f32 v{153+mt}, v{acc}, v{acc+1}")
                            a.vmem(f"buffer_store_dword v{153+mt}, v{149+mt}, s[{sr}:{sr+3}], s46 offen", 'st')
                if isk:
                    wave_max(a, 160, 161)
                    a("s_lshl_b32 s46, s23, 8"); a("s_lshl_b32 s47, s27, 2"); a("s_add_u32 s46, s46, s47"); a("s_sub_u32 s46, s46, 1024")
                    a("v_mov_b32 v146, 0"); a.vmem("buffer_store_dword v160, v146, s[48:51], s46 offen", 'st')
            a("s_endpgm")
        else:
            a(f"v_mov_b32 v160, 0")
            for i in range(0, 72, 2): a(f"v_max3_f32 v160, |v{VACC+i}|, |v{VACC+i+1}|, v160")
            a("s_and_b32 s46, s23, 3"); a(f"s_mul_i32 s46, s46, {8*KH}"); a(f"s_mul_i32 s47, s27, {KT}"); a("s_add_u32 s46, s46, s47"); a("s_add_u32 s46, s46, 1152")
            a("v_and_b32 v146, 15, v230"); a("v_bfe_u32 v147, v230, 4, 1"); a("v_bfe_u32 v148, v230, 5, 1")
            a("v_mul_u32_u24 v147, 304, v147"); a("v_lshl_add_u32 v147, v148, 3, v147")
            a(f"s_mov_b32 s47, {KH}")
            for j in range(9):
                a(f"v_add_u32 v148, {16*j}, v146"); a("v_mul_u32_u24 v149, 57, v148"); a("v_lshrrev_b32 v149, 10, v149")
                a("v_mul_u32_u24 v150, 18, v149"); a("v_sub_u32 v148, v148, v150"); a("v_mul_lo_u32 v149, v149, s47")
                a("v_lshl_add_u32 v149, v148, 4, v149"); a("v_add_u32 v149, v149, v147")
                for mt in range(2):
                    acc = VACC + (mt*9+j)*4; d = 152 + 2*mt
                    a(f"v_cvt_pk_bf16_f32 v{d}, v{acc}, v{acc+1}"); a(f"v_cvt_pk_bf16_f32 v{d+1}, v{acc+2}, v{acc+3}")
                    a.vmem(f"buffer_store_dwordx2 v[{d}:{d+1}], v149, s[40:43], s46 offen offset:{608*mt}", 'st')
                a("s_nop 0")
            a("v_and_b32 v146, 63, v230"); a("v_bfe_u32 v147, v146, 2, 3"); a("v_mul_lo_u32 v147, v147, s47"); a("v_and_b32 v148, 3, v146")
            a("v_mul_u32_u24 v148, 304, v148"); a("v_add_u32 v147, v147, v148"); a("v_add_u32 v147, 288, v147")
            for i in range(4): a(f"v_mov_b32 v{152+i}, 0x3f803f80")
            a.vmem("buffer_store_dwordx4 v[152:155], v147, s[40:43], s46 offen", 'st')
            wave_max(a, 160, 161)
            a("s_lshl_b32 s46, s23, 8"); a("s_lshl_b32 s47, s27, 2"); a("s_add_u32 s46, s46, s47"); a("s_sub_u32 s46, s46, 1024")
            a("v_mov_b32 v146, 0"); a.vmem("buffer_store_dword v160, v146, s[48:51], s46 offen", 'st')
            a("s_endpgm")
    a.lab("{P}GATE"); a.vm = []
    a("s_sub_u32 s18, s2, 448"); a("s_lshl_b32 s18, s18, 5")
    a("s_waitcnt lgkmcnt(0)")
    srd(a, 28, 4, 0, 2048*576*2); srd(a, 32, 14, 0, 1152); srd(a, 36, 16, WS_G, 8192)
    a("v_lshrrev_b32 v146, 3, v230"); a("v_add_u32 v146, s18, v146")
    a("v_and_b32 v147, 7, v230"); a("v_lshlrev_b32 v147, 4, v147")
    a("v_mul_u32_u24 v148, 1152, v146"); a("v_add_u32 v148, v148, v147")
    for i in range(9):
        a.vmem(f"buffer_load_dwordx4 v[{4*i}:{4*i+3}], v148, s[28:31], 0 offen offset:{128*i}", 'x')
        a.vmem(f"buffer_load_dwordx4 v[{36+4*i}:{36+4*i+3}], v147, s[32:35], 0 offen offset:{128*i}", 'x')
    a.wait_vm({'x'})
    a("v_mov_b32 v80, 0"); a("v_mov_b32 v81, 0")
    for i in range(36):
        a(f"v_lshlrev_b32 v72, 16, v{i}"); a(f"v_lshlrev_b32 v73, 16, v{36+i}"); a("v_fmac_f32 v80, v72, v73")
        a(f"v_and_b32 v74, 0xffff0000, v{i}"); a(f"v_and_b32 v75, 0xffff0000, v{36+i}"); a("v_fmac_f32 v81, v74, v75")
    a("v_add_f32 v80, v80, v81")
    for c in ("quad_perm:[1,0,3,2]", "quad_perm:[2,3,0,1]", "row_half_mirror"):
        a("s_nop 1"); a(f"v_add_f32_dpp v80, v80, v80 {c} row_mask:0xf bank_mask:0xf")
    a("v_mul_f32 v80, 0xbfb8aa3b, v80"); a("v_exp_f32 v80, v80"); a("s_nop 0"); a("v_add_f32 v80, 1.0, v80"); a("v_rcp_f32 v80, v80")
    a("v_lshlrev_b32 v146, 2, v146"); a("s_nop 0")
    a.vmem("buffer_store_dword v80, v146, s[36:39], 0 offen", 'st')
    a.lab("{P}END"); a("s_endpgm")
    return name, a.text().replace("{P}", name + "_"), kdesc(name, 232), (grid, 256, 79872)
```

```python
from gen_core import *
from gen_k1 import VACC, VB, VAF, VADDR, VT, TID, h_like_ids, wave_max
CH = 10240; NB = 5; NSPL = 4
def gemm2(a, pol):
    VB = 0; VAF = 36; VADDR = 52; VT = 61; TID = 70; TMP = 72
    a(f"v_mov_b32 v{TID}, v0")
    a("s_and_b32 s17, s2, 7") if False else None
    a("s_and_b32 s25, s2, 7"); a("s_lshr_b32 s19, s2, 3"); a("s_lshr_b32 s18, s25, 1")
    a("s_and_b32 s23, s19, 3"); a("s_lshr_b32 s24, s19, 2"); a("s_and_b32 s25, s25, 1"); a("s_lshl_b32 s25, s25, 3"); a("s_add_u32 s24, s24, s25")
    a("s_mul_i32 s44, s24, 144"); a("s_mul_i32 s25, s18, 36"); a("s_add_u32 s44, s44, s25"); a("s_lshl_b32 s44, s44, 13")
    a(f"s_mul_i32 s26, s18, {1152*1152}"); a("s_mul_i32 s25, s23, 288"); a("s_add_u32 s26, s26, s25")
    a("s_waitcnt lgkmcnt(0)")
    srd(a, 28, 16, WS_H, 2048*4608*2); srd(a, 32, 8, 0, 4608*576*2); srd(a, 40, 16, WS_P, NSPL*PSZ)
    g = Gemm(a, 36, 0, 576, 3, 3, 4, 1, 2, True, 0, VB, VAF, VADDR, 28, 32, 26, 44, 52, atiled=True, acca=True)
    a("s_mov_b32 s56, s44")
    g.setup(21, VT, TID); g.prologue_issue()
    if "touch" in a.opt:
        a(f"s_mul_i32 s58, s23, {9*8192}"); a("s_add_u32 s56, s56, s58"); touch_lin(a, 28, TID, VT, 56, 5, 59, TMP)
        a(f"s_mul_i32 s57, s18, {1152*1152}"); a("s_and_b32 s58, s2, 1"); a("s_lshl_b32 s58, s58, 5"); a("s_add_u32 s58, s58, s19"); a("s_mul_i32 s58, s58, 20736"); a("s_add_u32 s57, s57, s58"); touch_lin(a, 32, TID, VT, 57, 2, 59, TMP)
    for i in range(72): a(f"v_accvgpr_write_b32 a{i}, 0")
    g.run()
    a("s_lshl_b32 s45, s21, 1"); a("s_lshl_b32 s46, s24, 3"); a("s_add_u32 s45, s45, s46"); a("s_mul_i32 s45, s45, 36")
    a("s_mul_i32 s46, s23, 9"); a("s_add_u32 s45, s45, s46")
    a("s_lshl_b32 s45, s45, 9"); a(f"s_mul_i32 s46, s18, {PSZ}"); a("s_add_u32 s45, s45, s46")
    a(f"v_and_b32 v{VT}, 63, v{TID}"); a(f"v_lshlrev_b32 v{VT}, 3, v{VT}")
    n = 0
    for mt in range(2):
        for j in range(9):
            acc = (mt*9+j)*4; d = VB + 2*n; x = TMP + 4*(n % 4); n += 1
            for r in range(4): a(f"v_accvgpr_read_b32 v{x+r}, a{acc+r}")
            a(f"v_cvt_pk_bf16_f32 v{d}, v{x}, v{x+1}"); a(f"v_cvt_pk_bf16_f32 v{d+1}, v{x+2}, v{x+3}")
            if j == 8: a(f"s_add_u32 s46, s45, 4096")
            a.vmem(f"buffer_store_dwordx2 v[{d}:{d+1}], v{VT}, s[40:43], s{46 if j == 8 else 45} offen offset:{512*j if j < 8 else 0}{pol}", 'st')
        a(f"s_add_u32 s45, s45, {36*512}")
    stamp(a, 3); stamp_out(a, 4, [0, 128, 248], VT)
    a("s_endpgm")

S = [0, 16]; O = [0]; P = [32]; KL = [40, 46]; KH2 = [44, 50]; V = [52, 60]; QL = [68]; QH2 = [72]; AK = 74; AK2 = 75; AV = 76; T = 78; NQ = 1
def attn(a, pol):
    a("s_sub_u32 s18, s2, 256"); a("s_and_b32 s19, s18, 7"); a("s_lshr_b32 s18, s18, 3")
    a("s_lshl_b32 s19, s19, 2"); a("s_lshr_b32 s20, s18, 4"); a("s_add_u32 s19, s19, s20")
    a("s_and_b32 s18, s18, 15"); a("s_lshl_b32 s18, s18, 2"); a("s_add_u32 s18, s18, s21")
    a("s_waitcnt lgkmcnt(0)")
    srd(a, 28, 16, WS_QF, 32*QH); srd(a, 32, 16, WS_KV, 32*KH); srd(a, 36, 16, WS_MX, 4096); srd(a, 40, 16, WS_O, 2048*576*2)
    a(f"v_and_b32 v{T}, 63, v0"); a(f"v_lshlrev_b32 v{AK}, 4, v{T}")
    a(f"s_mul_i32 s22, s19, {KH}")
    a(f"s_mul_i32 s23, s21, {KT}"); a(f"v_add_u32 v{T+1}, s23, v{AK}")
    def dma(c):
        a(f"s_add_u32 m0, s23, {(c % NB)*CH}"); a(f"s_add_u32 s24, s22, {c*CH}")
        a.vmem(f"buffer_load_dwordx4 v{T+1}, s[32:35], s24 offen lds", ('C', c))
        a.vmem(f"buffer_load_dwordx4 v{T+1}, s[32:35], s24 offen offset:1024 lds", ('C', c))
        a("s_mov_b32 exec_hi, 0"); a.vmem(f"buffer_load_dwordx4 v{T+1}, s[32:35], s24 offen offset:2048 lds", ('C', c)); a("s_mov_b64 exec, -1")
    dma(0)
    a(f"s_mul_i32 s24, s19, {QH}"); a(f"s_mul_i32 s25, s18, {QT}"); a("s_add_u32 s24, s24, s25")
    a(f"v_and_b32 v{T+2}, 31, v{T}"); a(f"v_lshlrev_b32 v{AK2}, 2, v{T+2}"); a(f"v_add_u32 v{AK2}, 1024, v{AK2}")
    a(f"v_mov_b32 v{QH2[0]}, 0"); a(f"v_mov_b32 v{QH2[0]+1}, 0")
    for q in range(2): a(f"v_mov_b32 v{KH2[q]+1}, 0x3f803f80")
    for q in range(NQ):
        a.vmem(f"buffer_load_dwordx4 v[{QL[q]}:{QL[q]+3}], v{AK}, s[28:31], s24 offen offset:{QT*q}", 'q')
        a("s_mov_b32 exec_hi, 0"); a.vmem(f"buffer_load_dword v{QH2[q]}, v{AK2}, s[28:31], s24 offen offset:{QT*q}", 'q'); a("s_mov_b64 exec, -1")
    a("s_lshr_b32 s25, s19, 3"); a("s_lshl_b32 s25, s25, 8"); a(f"v_lshlrev_b32 v{T+3}, 2, v{T}")
    a.vmem(f"buffer_load_dword v{T+4}, v{T+3}, s[36:39], s25 offen", 'q')
    a.vmem(f"buffer_load_dword v{T+5}, v{T+3}, s[36:39], s25 offen offset:1024", 'q')
    dma(1); dma(2); dma(3)
    a(f"v_lshrrev_b32 v{T+3}, 5, v{T}"); a(f"v_mul_u32_u24 v{T+3}, 19, v{T+3}"); a(f"v_add_u32 v{T+3}, v{T+3}, v{T+2}"); a(f"v_lshlrev_b32 v{AV}, 4, v{T+3}"); a(f"v_add_u32 v{AV}, 1152, v{AV}")
    for i in range(16): a(f"v_accvgpr_write_b32 a{i}, 0")
    a.wait_vm({'q'})
    a(f"v_max_f32 v{T+4}, v{T+4}, v{T+5}"); wave_max(a, T+4, T+5)
    a(f"v_mov_b32 v{T+6}, 0"); a(f"v_mov_b32 v{T+9}, 0")
    for q in range(NQ):
        d = T+6 if q == 0 else T+9
        for r in [QL[q], QL[q]+1, QL[q]+2, QL[q]+3, QH2[q]]:
            a(f"v_lshlrev_b32 v{T+7}, 16, v{r}"); a(f"v_and_b32 v{T+8}, 0xffff0000, v{r}"); a(f"v_fmac_f32 v{d}, v{T+7}, v{T+7}"); a(f"v_fmac_f32 v{d}, v{T+8}, v{T+8}")
        a(f"v_mov_b32 v{T+7}, v{d}"); a("s_nop 1"); a(f"v_permlane32_swap_b32 v{T+7}, v{d}"); a("s_nop 1"); a(f"v_add_f32 v{d}, v{d}, v{T+7}")
    a(f"v_max_f32 v{T+6}, v{T+6}, v{T+9}")
    wave_max(a, T+6, T+7)
    a(f"v_mul_f32 v{T+7}, v{T+4}, v{T+4}"); a(f"v_mul_f32 v{T+7}, v{T+7}, v{T+6}"); a(f"v_mul_f32 v{T+7}, 0x41900000, v{T+7}")
    a(f"v_mov_b32 v{T+8}, 0x45c80000"); a(f"v_cmp_le_f32 vcc, v{T+7}, v{T+8}"); a("s_mov_b64 s[46:47], vcc")
    a(f"v_mov_b32 v{T+8}, 0x49800000"); a(f"v_cmp_le_f32 vcc, v{T+4}, v{T+8}"); a("s_nop 4"); a("s_and_b64 s[46:47], s[46:47], vcc")
    a("s_cmp_eq_u64 s[46:47], -1"); a("s_cbranch_scc1 {P}FAST")
    a("s_mov_b32 s25, s22"); a("s_mov_b32 s26, 64"); a(f"v_mov_b32 v{T+6}, 0xff800000"); a(f"v_mov_b32 v{T+7}, 0xff800000"); a(f"v_mov_b32 v{P[0]+5}, 0")
    a.lab("{P}FB")
    a(f"buffer_load_dwordx4 v[{P[0]}:{P[0]+3}], v{AK}, s[32:35], s25 offen"); a(f"buffer_load_dword v{P[0]+4}, v{AK2}, s[32:35], s25 offen")
    a("s_waitcnt vmcnt(0)")
    for q in range(NQ):
        s = S[q]; a(f"v_mfma_f32_32x32x16_bf16 v[{s}:{s+15}], v[{P[0]}:{P[0]+3}], v[{QL[q]}:{QL[q]+3}], 0")
    for q in range(NQ):
        s = S[q]; a(f"v_mfma_f32_32x32x8_bf16 v[{s}:{s+15}], v[{P[0]+4}:{P[0]+5}], v[{QH2[q]}:{QH2[q]+1}], v[{s}:{s+15}]")
    a("s_nop 7"); a("s_nop 7"); a("s_nop 3")
    for q in range(NQ):
        for i in range(0, 16, 2): a(f"v_max3_f32 v{T+6+q}, v{S[q]+i}, v{S[q]+i+1}, v{T+6+q}")
    a(f"s_add_u32 s25, s25, {KT}"); a("s_sub_u32 s26, s26, 1"); a("s_cmp_lg_u32 s26, 0"); a("s_cbranch_scc1 {P}FB")
    for q in range(NQ):
        a(f"v_mov_b32 v{T+8}, v{T+6+q}"); a("s_nop 1"); a(f"v_permlane32_swap_b32 v{T+8}, v{T+6+q}"); a("s_nop 1"); a(f"v_max_f32 v{T+6+q}, v{T+6+q}, v{T+8}")
        a(f"v_sub_f32 v{T+8}, 0, v{T+6+q}"); a(f"v_and_b32 v{T+9}, 0xffff0000, v{T+8}"); a(f"v_sub_f32 v{T+8}, v{T+8}, v{T+9}")
        a(f"v_lshrrev_b32 v{T+9}, 16, v{T+9}"); a(f"v_and_b32 v{T+8}, 0xffff0000, v{T+8}")
        a("s_mov_b32 exec_hi, 0"); a(f"v_or_b32 v{QH2[q]+1}, v{T+8}, v{T+9}"); a("s_mov_b64 exec, -1")
    a.lab("{P}FAST")
    def off(t): return ((t // 4) % NB) * CH + (t % 4) * KT
    def rdK(t):
        k = t % 2
        a(f"ds_read_b128 v[{KL[k]}:{KL[k]+3}], v{AK} offset:{off(t)}"); a(f"ds_read_b32 v{KH2[k]}, v{AK2} offset:{off(t)}")
    def rdV(t):
        v = V[t % 2]
        a(f"ds_read_b128 v[{v}:{v+3}], v{AV} offset:{off(t)}"); a(f"ds_read_b128 v[{v+4}:{v+7}], v{AV} offset:{off(t)+608}")
    def ma(t):
        s = S[t % 2]; k = t % 2
        a(f"v_mfma_f32_32x32x16_bf16 v[{s}:{s+15}], v[{KL[k]}:{KL[k]+3}], v[{QL[0]}:{QL[0]+3}], 0")
    def mb(t):
        s = S[t % 2]; k = t % 2
        a(f"v_mfma_f32_32x32x8_bf16 v[{s}:{s+15}], v[{KH2[k]}:{KH2[k]+1}], v[{QH2[0]}:{QH2[0]+1}], v[{s}:{s+15}]")
    def mc(t, m):
        v = V[t % 2] + 4*m; p = P[0] + 4*m
        a(f"v_mfma_f32_32x32x16_bf16 a[0:15], v[{v}:{v+3}], v[{p}:{p+3}], a[0:15]")
    a.wait_vm({('C', 0)}); a("s_barrier")
    stamp(a, 1)
    rdK(0); rdK(1); a("s_waitcnt lgkmcnt(2)"); ma(0); mb(0); a("s_nop 7"); a("s_nop 7")
    for t in range(64):
        s = S[t % 2]
        a("s_waitcnt lgkmcnt(0)")
        if t % 4 == 2 and t + 2 < 64:
            c = (t + 2) // 4
            a.wait_vm({('C', c)}); a("s_barrier")
            if c + 3 < 16: dma(c + 3)
        def ex(i0):
            for i in range(i0, i0 + 4): a(f"v_exp_f32 v{s+i}, v{s+i}")
        if t + 1 < 64: ma(t + 1)
        rdV(t)
        ex(0)
        if t > 0: mc(t - 1, 0)
        ex(4)
        if t + 1 < 64: mb(t + 1)
        if t + 2 < 64: rdK(t + 2)
        ex(8)
        if t > 0: mc(t - 1, 1)
        ex(12)
        for i in range(8): a(f"v_cvt_pk_bf16_f32 v{P[0]+i}, v{s+2*i}, v{s+2*i+1}")
    a("s_waitcnt lgkmcnt(0)"); mc(63, 0); mc(63, 1); stamp(a, 2)
    a("s_nop 7"); a("s_nop 7"); a("s_nop 3")
    a(f"v_and_b32 v{T+3}, 15, v{T}"); a(f"v_lshlrev_b32 v{T+3}, 4, v{T+3}")
    a(f"v_bfe_u32 v{T+4}, v{T}, 4, 1"); a(f"s_lshl_b32 s24, s18, 1"); a(f"v_add_u32 v{T+4}, s24, v{T+4}"); a(f"v_mul_u32_u24 v{T+4}, {18*1024}, v{T+4}"); a(f"v_add_u32 v{T+3}, v{T+3}, v{T+4}")
    a("s_mul_i32 s24, s19, 18"); a(f"v_lshrrev_b32 v{T+4}, 5, v{T}"); a(f"v_lshlrev_b32 v{T+4}, 2, v{T+4}"); a(f"v_add_u32 v{T+4}, s24, v{T+4}")
    for p, rho in enumerate([0, 2, 4, 6, 8]):
        dd = 8*(rho//4) + rho % 4
        a(f"v_add_u32 v{T+5}, {dd}, v{T+4}")
        a(f"v_lshrrev_b32 v{T+6}, 3, v{T+5}"); a(f"v_lshlrev_b32 v{T+6}, 8, v{T+6}")
        a(f"v_and_b32 v{T+5}, 7, v{T+5}"); a(f"v_lshl_add_u32 v{T+6}, v{T+5}, 1, v{T+6}"); a(f"v_add_u32 v{T+10+p}, v{T+6}, v{T+3}")
    a(f"s_mov_b32 s25, {2*18*1024}")
    for q in range(NQ):
        o = 0
        for i in range(11): a(f"v_accvgpr_read_b32 v{i}, a{O[q]+i}")
        a("s_nop 0")
        a(f"v_mov_b32 v{T+1}, v{o+10}"); a(f"v_mov_b32 v{T+2}, v{o+10}"); a("s_nop 1"); a(f"v_permlane32_swap_b32 v{T+1}, v{T+2}"); a("s_nop 1")
        a(f"v_rcp_f32 v{T+1}, v{T+1}"); a("s_nop 0")
        for p, rho in enumerate([0, 2, 4, 6, 8]):
            a(f"v_mul_f32 v{o+rho}, v{o+rho}, v{T+1}"); a(f"v_mul_f32 v{o+rho+1}, v{o+rho+1}, v{T+1}")
            a(f"v_cvt_pk_bf16_f32 v{P[q]+p}, v{o+rho}, v{o+rho+1}")
            if p == 4: a("s_mov_b32 exec_hi, 0")
            a.vmem(f"buffer_store_dword v{P[q]+p}, v{T+10+p}, s[40:43], {'s25' if q else '0'} offen{pol}", 'st')
            if p == 4: a("s_mov_b64 exec, -1")
    stamp(a, 3); stamp_out(a, 4, [256, 384, 512, 640, 760], T, 3)
    a("s_endpgm")

def k2(name="k2_kernel", opt=(), grid=768):
    a = Asm(); a.opt = opt; pol = " sc1"
    if "attonly" in opt: a("s_add_u32 s2, s2, 256")
    stamp(a, 0)
    a("s_cmp_ge_u32 s2, 768"); a("s_cbranch_scc1 {P}END"); a("s_nop 0")
    a("s_load_dwordx2 s[8:9], s[0:1], 48")
    a("s_load_dwordx2 s[16:17], s[0:1], 88")
    a(f"v_lshrrev_b32 v1, 6, v0"); a("s_nop 0"); a(f"v_readfirstlane_b32 s21, v1")
    a("s_cmp_ge_u32 s2, 256"); a("s_cbranch_scc1 {P}ATT")
    gemm2(a, pol)
    a.lab("{P}ATT"); a.vm = []
    attn(a, "")
    a.lab("{P}END"); a("s_endpgm")
    return name, a.text().replace("{P}", name + "_"), kdesc(name, 96, acc=72), (grid, 256, 52224)

def k3(name="k3_kernel"):
    a = Asm(); a.opt = (); TD = 63
    ACC = 0; B3 = 24; AD = 36; G = 47; BI = 50; t = 56; A3 = 64
    a("s_cmp_ge_u32 s2, 256"); a("s_cbranch_scc1 {P}END"); a(f"v_mov_b32 v{TD}, v0")
    a("s_load_dwordx2 s[8:9], s[0:1], 16")
    a("s_load_dwordx2 s[10:11], s[0:1], 56")
    a("s_load_dwordx2 s[12:13], s[0:1], 72")
    a("s_load_dwordx2 s[16:17], s[0:1], 88")
    a(f"v_lshrrev_b32 v{t}, 6, v{TD}"); a("s_nop 0"); a(f"v_readfirstlane_b32 s21, v{t}")
    a("s_and_b32 s18, s2, 7"); a("s_lshr_b32 s19, s2, 3"); a("s_and_b32 s23, s19, 3"); a("s_lshr_b32 s24, s19, 2"); a("s_lshl_b32 s18, s18, 3"); a("s_add_u32 s24, s24, s18")
    a("s_mul_i32 s44, s24, 2*18*1024"); a("s_mul_i32 s26, s23, 288")
    a("s_waitcnt lgkmcnt(0)")
    srd(a, 28, 16, WS_O, 2048*576*2); srd(a, 32, 8, 0, 576*576*2); srd(a, 36, 16, WS_P, NSPL*PSZ); srd(a, 40, 12, 0, 2048*576*2)
    srd(a, 48, 16, WS_G, 8192); srd(a, 56, 10, 0, 1152)
    g = Gemm(a, 18, 0, 576, 7, 6, 1, 1, 2, True, ACC, B3, A3, AD, 28, 32, 26, 44, 52, adirect=True)
    a(f"v_and_b32 v{t}, 63, v{TD}"); a(f"v_lshlrev_b32 v{AD+5}, 4, v{t}"); a(f"v_add_u32 v{AD+6}, {18*1024}, v{AD+5}")
    g.setup(21, t+1, TD); g.prologue_issue()
    for i in range(24): a(f"v_mov_b32 v{i}, 0")
    a("s_mul_i32 s45, s24, 72"); a("s_mul_i32 s46, s23, 9"); a("s_add_u32 s45, s45, s46"); a("s_mul_i32 s46, s21, 3"); a("s_add_u32 s45, s45, s46"); a("s_lshl_b32 s45, s45, 9")
    a(f"v_lshlrev_b32 v{t+1}, 3, v{t}")
    PRB = 128
    for sp in range(NSPL):
        for mt in range(2):
            a(f"s_add_u32 s46, s45, {sp*PSZ + mt*36*512}")
            for j in range(3):
                r = PRB + ((mt*3+j)*8 + sp)*2
                a.vmem(f"buffer_load_dwordx2 v[{r}:{r+1}], v{t+1}, s[36:39], s46 offen offset:{512*j}", 'p')
    a(f"v_and_b32 v{t+2}, 15, v{t}"); a("s_lshl_b32 s46, s24, 5"); a(f"v_add_u32 v{t+2}, s46, v{t+2}"); a(f"v_lshlrev_b32 v{t+3}, 2, v{t+2}")
    a.vmem(f"buffer_load_dword v{G}, v{t+3}, s[48:51], 0 offen", 'p'); a.vmem(f"buffer_load_dword v{G+1}, v{t+3}, s[48:51], 0 offen offset:64", 'p')
    a("s_mul_i32 s46, s21, 96"); a("s_add_u32 s47, s46, s23") ; a("s_mul_i32 s47, s23, 288"); a("s_add_u32 s47, s47, s46")
    a(f"v_lshrrev_b32 v{t+3}, 4, v{t}"); a(f"v_lshlrev_b32 v{t+3}, 3, v{t+3}"); a(f"v_add_u32 v{t+3}, s47, v{t+3}")
    for j in range(3): a.vmem(f"buffer_load_dwordx2 v[{BI+2*j}:{BI+2*j+1}], v{t+3}, s[56:59], 0 offen offset:{32*j}", 'p')
    a(f"v_mul_u32_u24 v{AD+9}, 1152, v{t+2}"); a(f"v_add_u32 v{AD+9}, v{AD+9}, v{t+3}"); a(f"v_add_u32 v{AD+10}, {16*1152}, v{AD+9}")
    g.run()
    a.wait_vm({'p'})
    for mt in range(2):
        a(f"v_sub_f32 v{t+4}, 1.0, v{G+mt}")
        for j in range(3):
            acc = (mt*3+j)*4; x = t+5
            s0 = B3
            a(f"v_lshlrev_b32 v{s0}, 16, v{BI+2*j}"); a(f"v_and_b32 v{s0+1}, 0xffff0000, v{BI+2*j}"); a(f"v_lshlrev_b32 v{s0+2}, 16, v{BI+2*j+1}"); a(f"v_and_b32 v{s0+3}, 0xffff0000, v{BI+2*j+1}")
            for sp in range(NSPL):
                r = PRB + ((mt*3+j)*8 + sp)*2
                a(f"v_lshlrev_b32 v{s0+4}, 16, v{r}"); a(f"v_and_b32 v{s0+5}, 0xffff0000, v{r}"); a(f"v_lshlrev_b32 v{s0+6}, 16, v{r+1}"); a(f"v_and_b32 v{s0+7}, 0xffff0000, v{r+1}")
                a(f"v_pk_add_f32 v[{s0}:{s0+1}], v[{s0}:{s0+1}], v[{s0+4}:{s0+5}]"); a(f"v_pk_add_f32 v[{s0+2}:{s0+3}], v[{s0+2}:{s0+3}], v[{s0+6}:{s0+7}]")
            for r in range(4):
                a(f"v_mul_f32 v{s0+r}, v{t+4}, v{s0+r}"); a(f"v_fmac_f32 v{s0+r}, v{G+mt}, v{acc+r}")
            d = A3 + 2*(mt*3+j)
            a(f"v_cvt_pk_bf16_f32 v{d}, v{s0}, v{s0+1}"); a(f"v_cvt_pk_bf16_f32 v{d+1}, v{s0+2}, v{s0+3}")
            a.vmem(f"buffer_store_dwordx2 v[{d}:{d+1}], v{AD+9+mt}, s[40:43], 0 offen offset:{32*j}", 'st')
    a.lab("{P}END"); a("s_endpgm")
    return name, a.text().replace("{P}", name + "_"), kdesc(name, 224), (256, 192, 7*9216)
def kernels(): return [k2(), k3()]
```

```python
NAME = "gated_mix__softmax_full_mha__dense_activation_squared_relu__prompt"
WS_H   = 0
WS_QF  = 0x1200000
QT = 1152; QH = 64*QT
WS_KV  = WS_QF + 32*QH
KT = 2560; KH = 64*KT
WS_MX  = WS_KV + 32*KH
WS_G   = WS_MX + 4096
WS_O   = WS_G + 8192
WS_P   = WS_O + 2048*576*2
PSZ = 2048*576*2

class Asm:
    def __init__(s): s.l = []; s.vm = []
    def __call__(s, t): s.l.append("  " + t)
    def lab(s, t): s.l.append(t + ":")
    def c(s, t): s.l.append("  ; " + t)
    def vmem(s, t, tag): s.l.append("  " + t); s.vm.append(tag)
    def wait_vm(s, tags):
        idx = [i for i, t in enumerate(s.vm) if t in tags]
        if not idx: return
        n = len(s.vm) - 1 - max(idx)
        n = min(n, 63)
        s.l.append(f"  s_waitcnt vmcnt({n})")
        s.vm = s.vm[len(s.vm) - n:] if n else []
    def text(s): return "\n".join(s.l) + "\n"

def srd(a, d, base, off, size):
    if off:
        a(f"s_add_u32 s{d}, s{base}, {off}")
        a(f"s_addc_u32 s{d+1}, s{base+1}, 0")
    else:
        a(f"s_mov_b32 s{d}, s{base}"); a(f"s_mov_b32 s{d+1}, s{base+1}")
    a(f"s_mov_b32 s{d+2}, {size}")
    a(f"s_mov_b32 s{d+3}, 0x20000")

def kdesc(name, vg, sg=96, acc=0):
    vg4 = (vg + 3) // 4 * 4
    if acc: vg = vg4 + acc
    return f""".p2align 6
.amdhsa_kernel {name}
  .amdhsa_next_free_vgpr {vg}
  .amdhsa_next_free_sgpr {sg}
  .amdhsa_accum_offset {vg4}
  .amdhsa_group_segment_fixed_size 0
  .amdhsa_kernarg_size 96
  .amdhsa_user_sgpr_count 2
  .amdhsa_user_sgpr_kernarg_segment_ptr 1
  .amdhsa_system_sgpr_workgroup_id_x 1
.end_amdhsa_kernel
"""
def khead(name):
    return f".globl {name}\n.p2align 8\n.type {name},@function\n{name}:\n"

STG = 9216

class Gemm:
    def __init__(s, a, nsteps, lda, ldb, R, PD, WM, WN, MT, trans, vacc, vB, vA, vaddr, sA, sB, sBk, sAk, sM0, adirect=False, atiled=False, acca=False):
        s.__dict__.update(locals()); del s.__dict__['s']
        s.NT = 3 if adirect else 9
        s.NW = 3 if adirect else 4
        s.BM = WM * MT * 16
        s.ASZ = 0 if adirect else s.BM * 64
        s.STG = s.ASZ + WN * 9216
        s.nBch = WN * 576 // s.NW
        s.nBi = (s.nBch + 63) // 64
        s.nAi = 0 if adirect else s.BM * 4 // 4 // 64
        s.lg = []
        s.opt = getattr(a, 'opt', ())
        s.dyn = False
        s.roll = (PD == R) and not adirect and 'noroll' not in s.opt
    def setup(s, sw, vt, vtid):
        a = s.a; va = s.vaddr; m = s.sM0
        a(f"v_and_b32 v{vt}, 63, v{vtid}")
        a(f"s_mul_i32 s{m}, s{sw}, {s.nBch}")
        for i in range(s.nBi):
            q = vt + 1; rho = vt + 2; cc = vt + 3; k = vt + 4
            a(f"v_add_u32 v{q}, s{m}, v{vt}")
            if i: a(f"v_add_u32 v{q}, {64*i}, v{q}")
            a(f"v_min_u32 v{q}, {s.WN*576-1}, v{q}")
            if s.WN == 2:
                a(f"v_cmp_le_u32 vcc, 576, v{q}"); a(f"v_mov_b32 v{cc}, 0"); a(f"v_mov_b32 v{k}, 576")
                a(f"v_cndmask_b32 v{k}, v{cc}, v{k}, vcc"); a(f"v_sub_u32 v{q}, v{q}, v{k}"); a(f"v_lshrrev_b32 v{va+i}, 1, v{k}")
            a(f"v_mul_u32_u24 v{rho}, 3641, v{q}"); a(f"v_lshrrev_b32 v{rho}, 16, v{rho}")
            a(f"v_mul_u32_u24 v{cc}, 18, v{rho}"); a(f"v_sub_u32 v{cc}, v{q}, v{cc}")
            a(f"v_bfe_u32 v{k}, v{rho}, 2, 2"); a(f"v_lshlrev_b32 v{k}, 3, v{k}"); a(f"v_and_b32 v{q}, 3, v{rho}"); a(f"v_add_u32 v{k}, v{k}, v{q}")
            a(f"v_lshrrev_b32 v{q}, 4, v{rho}"); a(f"v_lshl_add_u32 v{k}, v{q}, 2, v{k}")
            a(f"v_mul_u32_u24 v{k}, {s.ldb*2}, v{k}"); a(f"v_lshl_add_u32 v{k}, v{cc}, 4, v{k}")
            if s.WN == 2: a(f"v_add_u32 v{k}, v{k}, v{va+i}")
            if i % 4: a(f"v_subrev_u32 v{va+i}, {1024*(i%4)}, v{k}")
            else: a(f"v_mov_b32 v{va+i}, v{k}")
        a(f"s_lshl_b32 s{m}, s{m}, 4"); a(f"s_add_u32 s{m}, s{m}, {s.ASZ}")
        a(f"v_lshrrev_b32 v{vt+1}, 2, v{vt}"); a(f"v_mul_u32_u24 v{vt+1}, 288, v{vt+1}"); a(f"v_and_b32 v{vt+2}, 3, v{vt}")
        a(f"v_lshl_add_u32 v{va+7}, v{vt+2}, 3, v{vt+1}")
        if s.adirect: a(f"s_mul_i32 s{m+2}, s{sw}, 96")
        elif s.WN == 2: a(f"s_and_b32 s{m+2}, s{sw}, 1"); a(f"s_mul_i32 s{m+2}, s{m+2}, 9216"); a(f"s_add_u32 s{m+2}, s{m+2}, {s.ASZ}")
        else: a(f"s_mov_b32 s{m+2}, {s.ASZ}")
        a(f"v_add_u32 v{va+7}, s{m+2}, v{va+7}")
        if not s.adirect:
            a(f"s_mul_i32 s{m+1}, s{sw}, {s.nAi*64}")
            for i in range(s.nAi):
                a(f"v_add_u32 v{vt+1}, s{m+1}, v{vt}")
                if i: a(f"v_add_u32 v{vt+1}, {64*i}, v{vt+1}")
                if s.atiled:
                    a(f"v_lshlrev_b32 v{vt+2}, 4, v{vt+1}")
                    if i: a(f"v_subrev_u32 v{va+5+i}, {1024*i}, v{vt+2}")
                    else: a(f"v_mov_b32 v{va+5}, v{vt+2}")
                    continue
                a(f"v_lshrrev_b32 v{vt+2}, 2, v{vt+1}"); a(f"v_bfe_u32 v{vt+3}, v{vt+2}, 3, 1"); a(f"v_mul_u32_u24 v{vt+3}, 3, v{vt+3}")
                a(f"v_and_b32 v{vt+1}, 3, v{vt+1}"); a(f"v_xor_b32 v{vt+1}, v{vt+1}, v{vt+3}")
                a(f"v_mul_u32_u24 v{vt+2}, {s.lda}, v{vt+2}"); a(f"v_lshl_add_u32 v{vt+2}, v{vt+1}, 4, v{vt+2}")
                if i: a(f"v_subrev_u32 v{va+5+i}, {1024*i}, v{vt+2}")
                else: a(f"v_mov_b32 v{va+5}, v{vt+2}")
            a(f"s_lshl_b32 s{m+1}, s{m+1}, 4")
            a(f"v_and_b32 v{vt+1}, 15, v{vt}"); a(f"v_bfe_u32 v{vt+2}, v{vt}, 3, 1"); a(f"v_mul_u32_u24 v{vt+2}, 3, v{vt+2}")
            a(f"v_lshrrev_b32 v{vt+3}, 4, v{vt}"); a(f"v_xor_b32 v{vt+2}, v{vt+2}, v{vt+3}"); a(f"v_lshlrev_b32 v{vt+2}, 4, v{vt+2}")
            a(f"v_lshl_add_u32 v{va+8}, v{vt+1}, 6, v{vt+2}")
            a(f"s_lshr_b32 s{m+2}, s{sw}, {1 if s.WN == 2 else 0}"); a(f"s_mul_i32 s{m+2}, s{m+2}, {s.MT*1024}")
            a(f"v_add_u32 v{va+8}, s{m+2}, v{va+8}")
    def issue(s, st, stA=None):
        L = []
        if st < s.nsteps and 'nob' not in s.opt:
            slot = 0 if s.dyn else st % s.R
            rem = s.nBch - 64 * (s.nBi - 1)
            for i in range(s.nBi):
                G = []
                if i % 4 == 0: G += [('s', f"s_add_u32 m0, s{s.sM0}, {slot*s.STG + 1024*i}", None), ('s', "s_nop 0", None)]
                part = (i == s.nBi - 1 and rem < 64)
                if part: G.append(('s', "s_mov_b32 exec_hi, 0" if rem == 32 else f"s_mov_b64 exec, {hex((1 << rem) - 1)}", None))
                G.append(('v', f"buffer_load_dwordx4 v{s.vaddr+i}, s[{s.sB}:{s.sB+3}], s{s.sBk} offen offset:{1024*(i%4)} lds", ('S', st)))
                if part: G.append(('s', "s_mov_b64 exec, -1", None))
                if i == s.nBi - 1: G.append(('s', f"s_add_u32 s{s.sBk}, s{s.sBk}, {s.ldb*64}", None))
                L.append(G)
        if st < s.nsteps and not s.adirect and 'noa' not in s.opt:
            slot = 0 if s.dyn else st % s.R
            for i in range(s.nAi):
                G = []
                if i == 0: G += [('s', f"s_add_u32 m0, s{s.sM0+1}, {slot*s.STG}", None), ('s', "s_nop 0", None)]
                G.append(('v', f"buffer_load_dwordx4 v{s.vaddr+5+i}, s[{s.sA}:{s.sA+3}], s{s.sAk} offen offset:{1024*i} lds", ('S', st)))
                if i == s.nAi - 1: G.append(('s', f"s_add_u32 s{s.sAk}, s{s.sAk}, {8192 if s.atiled else 64}", None))
                L.append(G)
        if s.adirect and stA is not None and 0 <= stA < s.nsteps:
            for mt in range(s.MT):
                r = s.vA + (stA % s.PD) * 8 + mt * 4
                L.append([('v', f"buffer_load_dwordx4 v[{r}:{r+3}], v{s.vaddr+5+mt}, s[{s.sA}:{s.sA+3}], s{s.sAk} offen", ('A', stA))] + ([('s', f"s_add_u32 s{s.sAk}, s{s.sAk}, 1024", None)] if mt == s.MT - 1 else []))
        return L
    def emit(s, L):
        for G in L:
            for k, t, tag in G:
                if k == 'v': s.a.vmem(t, tag)
                else: s.a(t)
    def ds(s, t, tag):
        if 'nolds' in s.opt: return
        s.a(t); s.lg.append(tag)
    def wait_lg(s, tags):
        idx = [i for i, t in enumerate(s.lg) if t in tags]
        if not idx: return
        n = min(len(s.lg) - 1 - max(idx), 15)
        s.a(f"s_waitcnt lgkmcnt({n})")
        s.lg = s.lg[len(s.lg) - n:] if n else []
    def readsB(s, st, j):
        r = s.vB + 4 * j; o = (0 if s.dyn else st % s.R) * s.STG + 32 * j
        s.ds(f"ds_read_b64_tr_b16 v[{r}:{r+1}], v{s.vaddr+7} offset:{o}", ('B', st, j))
        s.ds(f"ds_read_b64_tr_b16 v[{r+2}:{r+3}], v{s.vaddr+7} offset:{o+4608}", ('B', st, j))
    def readsA(s, st):
        if s.adirect: return
        for mt in range(s.MT):
            r = s.vA + (st % 2) * s.MT * 4 + mt * 4
            s.ds(f"ds_read_b128 v[{r}:{r+3}], v{s.vaddr+8} offset:{(0 if s.dyn else st % s.R) * s.STG + mt * 1024}", ('A', st))
    def prologue_issue(s):
        for st in range(s.PD): s.emit(s.issue(st, st - 1))
    def run(s):
        a = s.a; NT = s.NT; PD = s.PD
        rep = [o for o in s.opt if o.startswith('rep')]
        if rep: a(f"s_mov_b32 s60, {rep[0][3:]}"); a.lab("{P}REP")
        a.wait_vm({('S', 0)}); a("s_barrier")
        stamp(a, 1)
        s.readsA(0)
        for j in range(NT): s.readsB(0, j)
        texts = []
        if s.roll:
            s.dyn = True
            a("s_mov_b32 s61, 0"); a(f"s_mov_b32 s63, {s.STG}")
        main = a.l
        for st in range(s.nsteps):
            a.l = []
            more = st + 1 < s.nsteps
            if s.dyn and more:
                a("s_add_u32 s61, s61, 1"); a(f"s_cmp_eq_u32 s61, {s.R}"); a(f"s_cselect_b32 s62, {-(s.R-1)*s.STG}, s63"); a("s_cselect_b32 s61, 0, s61")
                a(f"v_add_u32 v{s.vaddr+7}, s62, v{s.vaddr+7}"); a(f"v_add_u32 v{s.vaddr+8}, s62, v{s.vaddr+8}")
            need = {('A', st)}
            if more: need.add(('S', st + 1))
            a.wait_vm(need)
            if s.PD == s.R and s.lg: a("s_waitcnt lgkmcnt(0)"); s.lg = []
            if more or s.PD == s.R: a("s_barrier")
            L = s.issue(st + PD, st + PD - 1)
            if s.dyn and L: L[-1] = L[-1] + [('s', f"s_add_u32 s{s.sM0}, s{s.sM0}, s62", None), ('s', f"s_add_u32 s{s.sM0+1}, s{s.sM0+1}, s62", None)]
            nper = (len(L) + NT - 1) // NT
            if more: s.readsA(st + 1)
            for j in range(NT):
                s.wait_lg({('B', st, j), ('A', st)})
                for mt in range(s.MT):
                    acc = s.vacc + (mt * NT + j) * 4
                    ra = s.vA + ((st % PD) * 8 if s.adirect else (st % 2) * s.MT * 4) + mt * 4
                    rb = s.vB + 4 * j
                    x, y = (rb, ra) if s.trans else (ra, rb)
                    c = "a" if s.acca else "v"
                    a(f"v_mfma_f32_16x16x32_bf16 {c}[{acc}:{acc+3}], v[{x}:{x+3}], v[{y}:{y+3}], {c}[{acc}:{acc+3}]")
                    if mt == 0: s.emit(L[:nper]); L = L[nper:]
                if more: s.readsB(st + 1, j)
            s.emit(L)
            texts.append(a.l)
        a.l = main
        best = (0, 0, 0)
        U = 2
        if s.roll:
            for s0 in range(0, s.nsteps):
                n = 1
                while s0 + (n + 1) * U <= s.nsteps and all(texts[s0 + k] == texts[s0 + n * U + k] for k in range(U)): n += 1
                if n > best[1]: best = (s0, n, U)
        st = 0
        while st < s.nsteps:
            if best[1] >= 2 and st == best[0]:
                Gemm.nlab = getattr(Gemm, 'nlab', 0) + 1; lab = f"{{P}}GL{Gemm.nlab}"
                a(f"s_mov_b32 s60, {best[1]}"); a.lab(lab)
                for k in range(U): a.c(f"---- step {st+k} (x{best[1]})"); a.l.extend(texts[st + k])
                a("s_sub_u32 s60, s60, 1"); a("s_cmp_lg_u32 s60, 0"); a(f"s_cbranch_scc1 {lab}")
                st += best[1] * U
            else:
                a.c(f"---- step {st}"); a.l.extend(texts[st]); st += 1
        s.dyn = False
        if rep:
            a("s_sub_u32 s60, s60, 1"); a("s_cmp_lg_u32 s60, 0"); a("s_cbranch_scc1 {P}REP"); a.opt = tuple(o for o in a.opt if not o.startswith('rep'))
        a("s_nop 7"); a("s_nop 1"); stamp(a, 2)

def touch_lin(a, sr, vtid, vt, sbase, n, stmp, vdummy):
    a(f"v_lshlrev_b32 v{vt}, 6, v{vtid}")
    for i in range(n):
        if i: a(f"s_add_u32 s{stmp}, s{sbase}, {16384*i}")
        a.vmem(f"buffer_load_dword v{vdummy}, v{vt}, s[{sr}:{sr+3}], s{stmp if i else sbase} offen", 'touch')
def touch_rows(a, sr, vtid, vt, sbase, rows, segs, ld, vdummy):
    n = (rows*segs + 255) // 256
    m = (65536 + segs - 1) // segs
    for i in range(n):
        a(f"v_add_u32 v{vt}, {256*i}, v{vtid}"); a(f"v_min_u32 v{vt}, {rows*segs-1}, v{vt}")
        a(f"v_mul_u32_u24 v{vt+1}, {m}, v{vt}"); a(f"v_lshrrev_b32 v{vt+1}, 16, v{vt+1}")
        a(f"v_mul_u32_u24 v{vt+2}, {segs}, v{vt+1}"); a(f"v_sub_u32 v{vt}, v{vt}, v{vt+2}")
        a(f"v_mul_u32_u24 v{vt+1}, {ld}, v{vt+1}"); a(f"v_lshl_add_u32 v{vt}, v{vt}, 6, v{vt+1}")
        a.vmem(f"buffer_load_dword v{vdummy}, v{vt}, s[{sr}:{sr+3}], s{sbase} offen", 'touch')
    for idx in range(rows*segs): assert (idx*m) >> 16 == idx // segs

def stamp(a, i):
    if "prof" in a.opt: a(f"s_memtime s[{70+2*i}:{71+2*i}]")
def stamp_out(a, n, wg, vt, slot0=0):
    if "prof" not in a.opt: return
    a("s_waitcnt vmcnt(0) lgkmcnt(0)"); a(f"s_memtime s[{70+2*n}:{71+2*n}]"); a("s_load_dwordx2 s[66:67], s[0:1], 80"); a("s_waitcnt lgkmcnt(0)")
    for k, w in enumerate(wg):
        a(f"s_cmp_lg_u32 s2, {w}"); a(f"s_cbranch_scc1 {{P}}SK{k}_{len(a.l)}"); lab = f"{{P}}SK{k}_{len(a.l)-1}"
        a("s_cmp_lg_u32 s21, 0"); a(f"s_cbranch_scc1 {lab}")
        a("s_mov_b32 s68, 256"); a("s_mov_b32 s69, 0x20000"); a("s_mov_b32 s64, s66"); a("s_mov_b32 s65, s67"); a("s_mov_b32 s66, s68"); a("s_mov_b32 s67, s69")
        for i in range(0, n + 1):
            a(f"v_mov_b32 v{vt}, s{70+2*i}"); a(f"v_mov_b32 v{vt+1}, {((k+slot0)*5+i)*4}"); a("s_nop 4")
            a(f"buffer_store_dword v{vt}, v{vt+1}, s[64:67], 0 offen")
        a.lab(lab)
```

```python
from gen_core import *
from gen_k1 import VACC, VB, VAF, VADDR, VT, TID, h_like_ids, wave_max
CH = 10240; NB = 5; NSPL = 4
def gemm2(a, pol):
    VB = 0; VAF = 36; VADDR = 52; VT = 61; TID = 70; TMP = 72
    a(f"v_mov_b32 v{TID}, v0")
    a("s_and_b32 s17, s2, 7") if False else None
    a("s_and_b32 s25, s2, 7"); a("s_lshr_b32 s19, s2, 3"); a("s_lshr_b32 s18, s25, 1")
    a("s_and_b32 s23, s19, 3"); a("s_lshr_b32 s24, s19, 2"); a("s_and_b32 s25, s25, 1"); a("s_lshl_b32 s25, s25, 3"); a("s_add_u32 s24, s24, s25")
    a("s_mul_i32 s44, s24, 144"); a("s_mul_i32 s25, s18, 36"); a("s_add_u32 s44, s44, s25"); a("s_lshl_b32 s44, s44, 13")
    a(f"s_mul_i32 s26, s18, {1152*1152}"); a("s_mul_i32 s25, s23, 288"); a("s_add_u32 s26, s26, s25")
    a("s_waitcnt lgkmcnt(0)")
    srd(a, 28, 16, WS_H, 2048*4608*2); srd(a, 32, 8, 0, 4608*576*2); srd(a, 40, 16, WS_P, NSPL*PSZ)
    g = Gemm(a, 36, 0, 576, 3, 3, 4, 1, 2, True, 0, VB, VAF, VADDR, 28, 32, 26, 44, 52, atiled=True, acca=True)
    a("s_mov_b32 s56, s44")
    g.setup(21, VT, TID); g.prologue_issue()
    if "touch" in a.opt:
        a(f"s_mul_i32 s58, s23, {9*8192}"); a("s_add_u32 s56, s56, s58"); touch_lin(a, 28, TID, VT, 56, 5, 59, TMP)
        a(f"s_mul_i32 s57, s18, {1152*1152}"); a("s_and_b32 s58, s2, 1"); a("s_lshl_b32 s58, s58, 5"); a("s_add_u32 s58, s58, s19"); a("s_mul_i32 s58, s58, 20736"); a("s_add_u32 s57, s57, s58"); touch_lin(a, 32, TID, VT, 57, 2, 59, TMP)
    for i in range(72): a(f"v_accvgpr_write_b32 a{i}, 0")
    g.run()
    a("s_lshl_b32 s45, s21, 1"); a("s_lshl_b32 s46, s24, 3"); a("s_add_u32 s45, s45, s46"); a("s_mul_i32 s45, s45, 36")
    a("s_mul_i32 s46, s23, 9"); a("s_add_u32 s45, s45, s46")
    a("s_lshl_b32 s45, s45, 9"); a(f"s_mul_i32 s46, s18, {PSZ}"); a("s_add_u32 s45, s45, s46")
    a(f"v_and_b32 v{VT}, 63, v{TID}"); a(f"v_lshlrev_b32 v{VT}, 3, v{VT}")
    n = 0
    for mt in range(2):
        for j in range(9):
            acc = (mt*9+j)*4; d = VB + 2*n; x = TMP + 4*(n % 4); n += 1
            for r in range(4): a(f"v_accvgpr_read_b32 v{x+r}, a{acc+r}")
            a(f"v_cvt_pk_bf16_f32 v{d}, v{x}, v{x+1}"); a(f"v_cvt_pk_bf16_f32 v{d+1}, v{x+2}, v{x+3}")
            if j == 8: a(f"s_add_u32 s46, s45, 4096")
            a.vmem(f"buffer_store_dwordx2 v[{d}:{d+1}], v{VT}, s[40:43], s{46 if j == 8 else 45} offen offset:{512*j if j < 8 else 0}{pol}", 'st')
        a(f"s_add_u32 s45, s45, {36*512}")
    stamp(a, 3); stamp_out(a, 4, [0, 128, 248], VT)
    a("s_endpgm")

S = [0, 16]; O = [0]; P = [32]; KL = [40, 46]; KH2 = [44, 50]; V = [52, 60]; QL = [68]; QH2 = [72]; AK = 74; AK2 = 75; AV = 76; T = 78; NQ = 1
def attn(a, pol):
    a("s_sub_u32 s18, s2, 256"); a("s_and_b32 s19, s18, 7"); a("s_lshr_b32 s18, s18, 3")
    a("s_lshl_b32 s19, s19, 2"); a("s_lshr_b32 s20, s18, 4"); a("s_add_u32 s19, s19, s20")
    a("s_and_b32 s18, s18, 15"); a("s_lshl_b32 s18, s18, 2"); a("s_add_u32 s18, s18, s21")
    a("s_waitcnt lgkmcnt(0)")
    srd(a, 28, 16, WS_QF, 32*QH); srd(a, 32, 16, WS_KV, 32*KH); srd(a, 36, 16, WS_MX, 4096); srd(a, 40, 16, WS_O, 2048*576*2)
    a(f"v_and_b32 v{T}, 63, v0"); a(f"v_lshlrev_b32 v{AK}, 4, v{T}")
    a(f"s_mul_i32 s22, s19, {KH}")
    a(f"s_mul_i32 s23, s21, {KT}"); a(f"v_add_u32 v{T+1}, s23, v{AK}")
    def dma(c):
        a(f"s_add_u32 m0, s23, {(c % NB)*CH}"); a(f"s_add_u32 s24, s22, {c*CH}")
        a.vmem(f"buffer_load_dwordx4 v{T+1}, s[32:35], s24 offen lds", ('C', c))
        a.vmem(f"buffer_load_dwordx4 v{T+1}, s[32:35], s24 offen offset:1024 lds", ('C', c))
        a("s_mov_b32 exec_hi, 0"); a.vmem(f"buffer_load_dwordx4 v{T+1}, s[32:35], s24 offen offset:2048 lds", ('C', c)); a("s_mov_b64 exec, -1")
    dma(0)
    a(f"s_mul_i32 s24, s19, {QH}"); a(f"s_mul_i32 s25, s18, {QT}"); a("s_add_u32 s24, s24, s25")
    a(f"v_and_b32 v{T+2}, 31, v{T}"); a(f"v_lshlrev_b32 v{AK2}, 2, v{T+2}"); a(f"v_add_u32 v{AK2}, 1024, v{AK2}")
    a(f"v_mov_b32 v{QH2[0]}, 0"); a(f"v_mov_b32 v{QH2[0]+1}, 0")
    for q in range(2): a(f"v_mov_b32 v{KH2[q]+1}, 0x3f803f80")
    for q in range(NQ):
        a.vmem(f"buffer_load_dwordx4 v[{QL[q]}:{QL[q]+3}], v{AK}, s[28:31], s24 offen offset:{QT*q}", 'q')
        a("s_mov_b32 exec_hi, 0"); a.vmem(f"buffer_load_dword v{QH2[q]}, v{AK2}, s[28:31], s24 offen offset:{QT*q}", 'q'); a("s_mov_b64 exec, -1")
    a("s_lshr_b32 s25, s19, 3"); a("s_lshl_b32 s25, s25, 8"); a(f"v_lshlrev_b32 v{T+3}, 2, v{T}")
    a.vmem(f"buffer_load_dword v{T+4}, v{T+3}, s[36:39], s25 offen", 'q')
    a.vmem(f"buffer_load_dword v{T+5}, v{T+3}, s[36:39], s25 offen offset:1024", 'q')
    dma(1); dma(2); dma(3)
    a(f"v_lshrrev_b32 v{T+3}, 5, v{T}"); a(f"v_mul_u32_u24 v{T+3}, 19, v{T+3}"); a(f"v_add_u32 v{T+3}, v{T+3}, v{T+2}"); a(f"v_lshlrev_b32 v{AV}, 4, v{T+3}"); a(f"v_add_u32 v{AV}, 1152, v{AV}")
    for i in range(16): a(f"v_accvgpr_write_b32 a{i}, 0")
    a.wait_vm({'q'})
    a(f"v_max_f32 v{T+4}, v{T+4}, v{T+5}"); wave_max(a, T+4, T+5)
    a(f"v_mov_b32 v{T+6}, 0"); a(f"v_mov_b32 v{T+9}, 0")
    for q in range(NQ):
        d = T+6 if q == 0 else T+9
        for r in [QL[q], QL[q]+1, QL[q]+2, QL[q]+3, QH2[q]]:
            a(f"v_lshlrev_b32 v{T+7}, 16, v{r}"); a(f"v_and_b32 v{T+8}, 0xffff0000, v{r}"); a(f"v_fmac_f32 v{d}, v{T+7}, v{T+7}"); a(f"v_fmac_f32 v{d}, v{T+8}, v{T+8}")
        a(f"v_mov_b32 v{T+7}, v{d}"); a("s_nop 1"); a(f"v_permlane32_swap_b32 v{T+7}, v{d}"); a("s_nop 1"); a(f"v_add_f32 v{d}, v{d}, v{T+7}")
    a(f"v_max_f32 v{T+6}, v{T+6}, v{T+9}")
    wave_max(a, T+6, T+7)
    a(f"v_mul_f32 v{T+7}, v{T+4}, v{T+4}"); a(f"v_mul_f32 v{T+7}, v{T+7}, v{T+6}"); a(f"v_mul_f32 v{T+7}, 0x41900000, v{T+7}")
    a(f"v_mov_b32 v{T+8}, 0x45c80000"); a(f"v_cmp_le_f32 vcc, v{T+7}, v{T+8}"); a("s_mov_b64 s[46:47], vcc")
    a(f"v_mov_b32 v{T+8}, 0x49800000"); a(f"v_cmp_le_f32 vcc, v{T+4}, v{T+8}"); a("s_nop 4"); a("s_and_b64 s[46:47], s[46:47], vcc")
    a("s_cmp_eq_u64 s[46:47], -1"); a("s_cbranch_scc1 {P}FAST")
    a("s_mov_b32 s25, s22"); a("s_mov_b32 s26, 64"); a(f"v_mov_b32 v{T+6}, 0xff800000"); a(f"v_mov_b32 v{T+7}, 0xff800000"); a(f"v_mov_b32 v{P[0]+5}, 0")
    a.lab("{P}FB")
    a(f"buffer_load_dwordx4 v[{P[0]}:{P[0]+3}], v{AK}, s[32:35], s25 offen"); a(f"buffer_load_dword v{P[0]+4}, v{AK2}, s[32:35], s25 offen")
    a("s_waitcnt vmcnt(0)")
    for q in range(NQ):
        s = S[q]; a(f"v_mfma_f32_32x32x16_bf16 v[{s}:{s+15}], v[{P[0]}:{P[0]+3}], v[{QL[q]}:{QL[q]+3}], 0")
    for q in range(NQ):
        s = S[q]; a(f"v_mfma_f32_32x32x8_bf16 v[{s}:{s+15}], v[{P[0]+4}:{P[0]+5}], v[{QH2[q]}:{QH2[q]+1}], v[{s}:{s+15}]")
    a("s_nop 7"); a("s_nop 7"); a("s_nop 3")
    for q in range(NQ):
        for i in range(0, 16, 2): a(f"v_max3_f32 v{T+6+q}, v{S[q]+i}, v{S[q]+i+1}, v{T+6+q}")
    a(f"s_add_u32 s25, s25, {KT}"); a("s_sub_u32 s26, s26, 1"); a("s_cmp_lg_u32 s26, 0"); a("s_cbranch_scc1 {P}FB")
    for q in range(NQ):
        a(f"v_mov_b32 v{T+8}, v{T+6+q}"); a("s_nop 1"); a(f"v_permlane32_swap_b32 v{T+8}, v{T+6+q}"); a("s_nop 1"); a(f"v_max_f32 v{T+6+q}, v{T+6+q}, v{T+8}")
        a(f"v_sub_f32 v{T+8}, 0, v{T+6+q}"); a(f"v_and_b32 v{T+9}, 0xffff0000, v{T+8}"); a(f"v_sub_f32 v{T+8}, v{T+8}, v{T+9}")
        a(f"v_lshrrev_b32 v{T+9}, 16, v{T+9}"); a(f"v_and_b32 v{T+8}, 0xffff0000, v{T+8}")
        a("s_mov_b32 exec_hi, 0"); a(f"v_or_b32 v{QH2[q]+1}, v{T+8}, v{T+9}"); a("s_mov_b64 exec, -1")
    a.lab("{P}FAST")
    roll = 'noroll' not in a.opt
    def off(t): return (t % 4) * KT if roll else ((t // 4) % NB) * CH + (t % 4) * KT
    def rdK(t):
        k = t % 2
        a(f"ds_read_b128 v[{KL[k]}:{KL[k]+3}], v{AK} offset:{off(t)}"); a(f"ds_read_b32 v{KH2[k]}, v{AK2} offset:{off(t)}")
    def rdV(t):
        v = V[t % 2]
        a(f"ds_read_b128 v[{v}:{v+3}], v{AV} offset:{off(t)}"); a(f"ds_read_b128 v[{v+4}:{v+7}], v{AV} offset:{off(t)+608}")
    def ma(t):
        s = S[t % 2]; k = t % 2
        a(f"v_mfma_f32_32x32x16_bf16 v[{s}:{s+15}], v[{KL[k]}:{KL[k]+3}], v[{QL[0]}:{QL[0]+3}], 0")
    def mb(t):
        s = S[t % 2]; k = t % 2
        a(f"v_mfma_f32_32x32x8_bf16 v[{s}:{s+15}], v[{KH2[k]}:{KH2[k]+1}], v[{QH2[0]}:{QH2[0]+1}], v[{s}:{s+15}]")
    def mc(t, m):
        v = V[t % 2] + 4*m; p = P[0] + 4*m
        a(f"v_mfma_f32_32x32x16_bf16 a[0:15], v[{v}:{v+3}], v[{p}:{p+3}], a[0:15]")
    a.wait_vm({('C', 0)}); a("s_barrier")
    stamp(a, 1)
    rdK(0); rdK(1); a("s_waitcnt lgkmcnt(2)"); ma(0); mb(0); a("s_nop 7"); a("s_nop 7")
    def tile(t, dyn=False):
        s = S[t % 2]
        if dyn and t % 4 == 2:
            a("s_add_u32 s61, s61, 1"); a(f"s_cmp_eq_u32 s61, {NB}"); a(f"s_cselect_b32 s62, {-(NB-1)*CH}, s50"); a("s_cselect_b32 s61, 0, s61")
        a("s_waitcnt lgkmcnt(0)")
        if dyn and t % 4 == 2:
            a(f"v_add_u32 v{AK}, s62, v{AK}"); a(f"v_add_u32 v{AK2}, s62, v{AK2}")
        if dyn and t % 4 == 0: a(f"v_add_u32 v{AV}, s62, v{AV}")
        if t % 4 == 2 and t + 2 < 64:
            c = (t + 2) // 4
            a.wait_vm({('C', c)}); a("s_barrier")
            if dyn:
                a("s_add_u32 m0, s23, s48"); a("s_min_u32 s24, s24, s63")
                a.vmem(f"buffer_load_dwordx4 v{T+1}, s[32:35], s24 offen lds", ('C', c+3))
                a.vmem(f"buffer_load_dwordx4 v{T+1}, s[32:35], s24 offen offset:1024 lds", ('C', c+3))
                a("s_mov_b32 exec_hi, 0"); a.vmem(f"buffer_load_dwordx4 v{T+1}, s[32:35], s24 offen offset:2048 lds", ('C', c+3)); a("s_mov_b64 exec, -1")
                a("s_mov_b32 s48, s49"); a("s_add_u32 s49, s49, s62"); a(f"s_add_u32 s24, s24, {CH}")
            elif c + 3 < 16: dma(c + 3)
        def ex(i0):
            for i in range(i0, i0 + 4): a(f"v_exp_f32 v{s+i}, v{s+i}")
        if t + 1 < 64: ma(t + 1)
        rdV(t)
        ex(0)
        if t > 0: mc(t - 1, 0)
        ex(4)
        if t + 1 < 64: mb(t + 1)
        if t + 2 < 64: rdK(t + 2)
        ex(8)
        if t > 0: mc(t - 1, 1)
        ex(12)
        for i in range(8): a(f"v_cvt_pk_bf16_f32 v{P[0]+i}, v{s+2*i}, v{s+2*i+1}")
    if not roll:
        for t in range(64): tile(t)
    else:
        a("s_mov_b32 s60, 15"); a("s_mov_b32 s61, 0"); a(f"s_mov_b32 s50, {CH}"); a(f"s_mov_b32 s48, {(NB-1)*CH}"); a("s_mov_b32 s49, 0")
        a(f"s_add_u32 s63, s22, {15*CH}"); a(f"s_add_u32 s24, s22, {4*CH}")
        tile(0); tile(1)
        a.lab("{P}ALOOP")
        for t in range(2, 6): tile(t, True)
        a("s_sub_u32 s60, s60, 1"); a("s_cmp_lg_u32 s60, 0"); a("s_cbranch_scc1 {P}ALOOP")
        tile(62); tile(63); a("s_waitcnt vmcnt(0)"); a.vm = []
    a("s_waitcnt lgkmcnt(0)"); mc(63, 0); mc(63, 1); stamp(a, 2)
    a("s_nop 7"); a("s_nop 7"); a("s_nop 3")
    a(f"v_and_b32 v{T+3}, 15, v{T}"); a(f"v_lshlrev_b32 v{T+3}, 4, v{T+3}")
    a(f"v_bfe_u32 v{T+4}, v{T}, 4, 1"); a(f"s_lshl_b32 s24, s18, 1"); a(f"v_add_u32 v{T+4}, s24, v{T+4}"); a(f"v_mul_u32_u24 v{T+4}, {18*1024}, v{T+4}"); a(f"v_add_u32 v{T+3}, v{T+3}, v{T+4}")
    a("s_mul_i32 s24, s19, 18"); a(f"v_lshrrev_b32 v{T+4}, 5, v{T}"); a(f"v_lshlrev_b32 v{T+4}, 2, v{T+4}"); a(f"v_add_u32 v{T+4}, s24, v{T+4}")
    for p, rho in enumerate([0, 2, 4, 6, 8]):
        dd = 8*(rho//4) + rho % 4
        a(f"v_add_u32 v{T+5}, {dd}, v{T+4}")
        a(f"v_lshrrev_b32 v{T+6}, 3, v{T+5}"); a(f"v_lshlrev_b32 v{T+6}, 8, v{T+6}")
        a(f"v_and_b32 v{T+5}, 7, v{T+5}"); a(f"v_lshl_add_u32 v{T+6}, v{T+5}, 1, v{T+6}"); a(f"v_add_u32 v{T+10+p}, v{T+6}, v{T+3}")
    a(f"s_mov_b32 s25, {2*18*1024}")
    for q in range(NQ):
        o = 0
        for i in range(11): a(f"v_accvgpr_read_b32 v{i}, a{O[q]+i}")
        a("s_nop 0")
        a(f"v_mov_b32 v{T+1}, v{o+10}"); a(f"v_mov_b32 v{T+2}, v{o+10}"); a("s_nop 1"); a(f"v_permlane32_swap_b32 v{T+1}, v{T+2}"); a("s_nop 1")
        a(f"v_rcp_f32 v{T+1}, v{T+1}"); a("s_nop 0")
        for p, rho in enumerate([0, 2, 4, 6, 8]):
            a(f"v_mul_f32 v{o+rho}, v{o+rho}, v{T+1}"); a(f"v_mul_f32 v{o+rho+1}, v{o+rho+1}, v{T+1}")
            a(f"v_cvt_pk_bf16_f32 v{P[q]+p}, v{o+rho}, v{o+rho+1}")
            if p == 4: a("s_mov_b32 exec_hi, 0")
            a.vmem(f"buffer_store_dword v{P[q]+p}, v{T+10+p}, s[40:43], {'s25' if q else '0'} offen{pol}", 'st')
            if p == 4: a("s_mov_b64 exec, -1")
    stamp(a, 3); stamp_out(a, 4, [256, 384, 512, 640, 760], T, 3)
    a("s_endpgm")

def k2(name="k2_kernel", opt=(), grid=768):
    a = Asm(); a.opt = opt; pol = " sc1"
    for o in opt:
        if o.startswith("p2_"): pol = " " + o[3:].replace("_", " ") if o != "p2_none" else ""
    if "attonly" in opt: a("s_add_u32 s2, s2, 256")
    stamp(a, 0)
    a("s_cmp_ge_u32 s2, 768"); a("s_cbranch_scc1 {P}END"); a("s_nop 0")
    if "attfirst" in opt:
        a("s_add_u32 s2, s2, 256"); a("s_cmp_ge_u32 s2, 768"); a("s_cselect_b32 s3, 768, 0"); a("s_sub_u32 s2, s2, s3")
    a("s_load_dwordx2 s[8:9], s[0:1], 48")
    a("s_load_dwordx2 s[16:17], s[0:1], 88")
    a(f"v_lshrrev_b32 v1, 6, v0"); a("s_nop 0"); a(f"v_readfirstlane_b32 s21, v1")
    a("s_cmp_ge_u32 s2, 256"); a("s_cbranch_scc1 {P}ATT")
    if "prio_gemm" in opt: a("s_setprio 3")
    gemm2(a, pol)
    a.lab("{P}ATT"); a.vm = []
    if "prio_att" in opt: a("s_setprio 3")
    attn(a, " sc1" if "osc1" in opt else "")
    a.lab("{P}END"); a("s_endpgm")
    return name, a.text().replace("{P}", name + "_"), kdesc(name, 96, acc=72), (grid, 256, 52224)

def k3(name="k3_kernel"):
    a = Asm(); a.opt = (); TD = 63
    ACC = 0; B3 = 24; AD = 36; G = 47; BI = 50; t = 56; A3 = 64
    a("s_cmp_ge_u32 s2, 256"); a("s_cbranch_scc1 {P}END"); a(f"v_mov_b32 v{TD}, v0")
    a("s_load_dwordx2 s[8:9], s[0:1], 16")
    a("s_load_dwordx2 s[10:11], s[0:1], 56")
    a("s_load_dwordx2 s[12:13], s[0:1], 72")
    a("s_load_dwordx2 s[16:17], s[0:1], 88")
    a(f"v_lshrrev_b32 v{t}, 6, v{TD}"); a("s_nop 0"); a(f"v_readfirstlane_b32 s21, v{t}")
    a("s_and_b32 s18, s2, 7"); a("s_lshr_b32 s19, s2, 3"); a("s_and_b32 s23, s19, 3"); a("s_lshr_b32 s24, s19, 2"); a("s_lshl_b32 s18, s18, 3"); a("s_add_u32 s24, s24, s18")
    a("s_mul_i32 s44, s24, 2*18*1024"); a("s_mul_i32 s26, s23, 288")
    a("s_waitcnt lgkmcnt(0)")
    srd(a, 28, 16, WS_O, 2048*576*2); srd(a, 32, 8, 0, 576*576*2); srd(a, 36, 16, WS_P, NSPL*PSZ); srd(a, 40, 12, 0, 2048*576*2)
    srd(a, 48, 16, WS_G, 8192); srd(a, 56, 10, 0, 1152)
    g = Gemm(a, 18, 0, 576, 7, 6, 1, 1, 2, True, ACC, B3, A3, AD, 28, 32, 26, 44, 52, adirect=True)
    a(f"v_and_b32 v{t}, 63, v{TD}"); a(f"v_lshlrev_b32 v{AD+5}, 4, v{t}"); a(f"v_add_u32 v{AD+6}, {18*1024}, v{AD+5}")
    g.setup(21, t+1, TD); g.prologue_issue()
    for i in range(24): a(f"v_mov_b32 v{i}, 0")
    a("s_mul_i32 s45, s24, 72"); a("s_mul_i32 s46, s23, 9"); a("s_add_u32 s45, s45, s46"); a("s_mul_i32 s46, s21, 3"); a("s_add_u32 s45, s45, s46"); a("s_lshl_b32 s45, s45, 9")
    a(f"v_lshlrev_b32 v{t+1}, 3, v{t}")
    PRB = 128
    for sp in range(NSPL):
        for mt in range(2):
            a(f"s_add_u32 s46, s45, {sp*PSZ + mt*36*512}")
            for j in range(3):
                r = PRB + ((mt*3+j)*8 + sp)*2
                a.vmem(f"buffer_load_dwordx2 v[{r}:{r+1}], v{t+1}, s[36:39], s46 offen offset:{512*j}", 'p')
    a(f"v_and_b32 v{t+2}, 15, v{t}"); a("s_lshl_b32 s46, s24, 5"); a(f"v_add_u32 v{t+2}, s46, v{t+2}"); a(f"v_lshlrev_b32 v{t+3}, 2, v{t+2}")
    a.vmem(f"buffer_load_dword v{G}, v{t+3}, s[48:51], 0 offen", 'p'); a.vmem(f"buffer_load_dword v{G+1}, v{t+3}, s[48:51], 0 offen offset:64", 'p')
    a("s_mul_i32 s46, s21, 96"); a("s_add_u32 s47, s46, s23") ; a("s_mul_i32 s47, s23, 288"); a("s_add_u32 s47, s47, s46")
    a(f"v_lshrrev_b32 v{t+3}, 4, v{t}"); a(f"v_lshlrev_b32 v{t+3}, 3, v{t+3}"); a(f"v_add_u32 v{t+3}, s47, v{t+3}")
    for j in range(3): a.vmem(f"buffer_load_dwordx2 v[{BI+2*j}:{BI+2*j+1}], v{t+3}, s[56:59], 0 offen offset:{32*j}", 'p')
    a(f"v_mul_u32_u24 v{AD+9}, 1152, v{t+2}"); a(f"v_add_u32 v{AD+9}, v{AD+9}, v{t+3}"); a(f"v_add_u32 v{AD+10}, {16*1152}, v{AD+9}")
    g.run()
    a.wait_vm({'p'})
    for mt in range(2):
        a(f"v_sub_f32 v{t+4}, 1.0, v{G+mt}")
        for j in range(3):
            acc = (mt*3+j)*4; x = t+5
            s0 = B3
            a(f"v_lshlrev_b32 v{s0}, 16, v{BI+2*j}"); a(f"v_and_b32 v{s0+1}, 0xffff0000, v{BI+2*j}"); a(f"v_lshlrev_b32 v{s0+2}, 16, v{BI+2*j+1}"); a(f"v_and_b32 v{s0+3}, 0xffff0000, v{BI+2*j+1}")
            for sp in range(NSPL):
                r = PRB + ((mt*3+j)*8 + sp)*2
                a(f"v_lshlrev_b32 v{s0+4}, 16, v{r}"); a(f"v_and_b32 v{s0+5}, 0xffff0000, v{r}"); a(f"v_lshlrev_b32 v{s0+6}, 16, v{r+1}"); a(f"v_and_b32 v{s0+7}, 0xffff0000, v{r+1}")
                a(f"v_pk_add_f32 v[{s0}:{s0+1}], v[{s0}:{s0+1}], v[{s0+4}:{s0+5}]"); a(f"v_pk_add_f32 v[{s0+2}:{s0+3}], v[{s0+2}:{s0+3}], v[{s0+6}:{s0+7}]")
            for r in range(4):
                a(f"v_mul_f32 v{s0+r}, v{t+4}, v{s0+r}"); a(f"v_fmac_f32 v{s0+r}, v{G+mt}, v{acc+r}")
            d = A3 + 2*(mt*3+j)
            a(f"v_cvt_pk_bf16_f32 v{d}, v{s0}, v{s0+1}"); a(f"v_cvt_pk_bf16_f32 v{d+1}, v{s0+2}, v{s0+3}")
            a.vmem(f"buffer_store_dwordx2 v[{d}:{d+1}], v{AD+9+mt}, s[40:43], 0 offen offset:{32*j}", 'st')
    a.lab("{P}END"); a("s_endpgm")
    return name, a.text().replace("{P}", name + "_"), kdesc(name, 224), (256, 192, 7*9216)
def kernels(): return [k2(), k3()]
```

```python
from gen_core import *
VACC=0; VB=144; VAF=180; VADDR=212; VT=221; TID=230
def wave_max(a, v, t):
    for c in ("row_ror:8","row_ror:4","row_ror:2","row_ror:1"):
        a("s_nop 1"); a(f"v_max_f32_dpp v{v}, v{v}, v{v} {c} row_mask:0xf bank_mask:0xf")
    a(f"v_mov_b32 v{t}, v{v}"); a("s_nop 1"); a(f"v_permlane16_swap_b32 v{t}, v{v}"); a("s_nop 1"); a(f"v_max_f32 v{v}, v{v}, v{t}")
    a(f"v_mov_b32 v{t}, v{v}"); a("s_nop 1"); a(f"v_permlane32_swap_b32 v{t}, v{v}"); a("s_nop 1"); a(f"v_max_f32 v{v}, v{v}, v{t}")

def h_epilogue(a, pol=" sc1"):
    t = VT
    for i in range(144): a(f"v_max_f32 v{i}, 0, v{i}")
    for i in range(0, 144, 2): a(f"v_pk_mul_f32 v[{i}:{i+1}], v[{i}:{i+1}], v[{i}:{i+1}]")
    a(f"v_and_b32 v{t}, 15, v{TID}"); a(f"v_bfe_u32 v{t+1}, v{TID}, 3, 1"); a(f"v_mul_u32_u24 v{t+1}, 3, v{t+1}")
    a(f"v_bfe_u32 v{t+2}, v{TID}, 4, 1"); a(f"v_bfe_u32 v{t+3}, v{TID}, 5, 1")
    a(f"s_lshr_b32 s45, s21, 1"); a("s_lshl_b32 s45, s45, 12")
    a(f"v_lshlrev_b32 v{t}, 6, v{t}"); a(f"v_add_u32 v{t}, s45, v{t}")
    a(f"v_lshl_add_u32 v{t+4}, v{t+2}, 1, v{t+3}"); a(f"v_xor_b32 v{t+4}, v{t+4}, v{t+1}"); a(f"v_lshl_add_u32 v{t+4}, v{t+4}, 4, v{t}")
    a("s_and_b32 s46, s21, 1"); a("s_lshl_b32 s47, s46, 1")
    a(f"v_add_u32 v{t+5}, s47, v{t+3}"); a(f"v_xor_b32 v{t+5}, v{t+5}, v{t+1}"); a(f"v_lshl_add_u32 v{t+5}, v{t+5}, 4, v{t}"); a(f"v_lshl_add_u32 v{t+5}, v{t+2}, 3, v{t+5}")
    a("s_mul_i32 s45, s24, 144"); a("s_mul_i32 s47, s23, 9"); a("s_add_u32 s45, s45, s47"); a("s_lshl_b32 s45, s45, 13")
    a("s_cmp_eq_u32 s46, 1"); a("s_cbranch_scc1 {P}HE1")
    for wn in range(2):
        if wn: a.lab("{P}HE1")
        n = 0
        for jp in range(5):
            if jp < 4: j = 2*jp + wn; kk = jp + 5*wn
            else: j = 0 if wn else 8; kk = 4
            a(f"s_add_u32 s47, s45, {kk*8192}")
            for mt in range(4):
                acc = VACC + (mt*9+j)*4; d = VB + 4*(n % 16); n += 1
                a(f"v_cvt_pk_bf16_f32 v{d}, v{acc}, v{acc+1}"); a(f"v_cvt_pk_bf16_f32 v{d+1}, v{acc+2}, v{acc+3}")
                if jp < 4:
                    a(f"v_cvt_pk_bf16_f32 v{d+2}, v{acc+4}, v{acc+5}"); a(f"v_cvt_pk_bf16_f32 v{d+3}, v{acc+6}, v{acc+7}")
                    a("s_nop 1"); a(f"v_permlane16_swap_b32 v{d}, v{d+2}"); a(f"v_permlane16_swap_b32 v{d+1}, v{d+3}")
                    a.vmem(f"buffer_store_dwordx4 v[{d}:{d+3}], v{t+4}, s[40:43], s47 offen offset:{1024*mt}{pol}", 'st')
                else:
                    a.vmem(f"buffer_store_dwordx2 v[{d}:{d+1}], v{t+5}, s[40:43], s47 offen offset:{1024*mt}{pol}", 'st')
        stamp(a, 3); stamp_out(a, 4, [0, 100, 255] if wn == 0 else [], VT)
        a("s_endpgm")

def h_like_ids(a):
    a("s_and_b32 s18, s2, 7"); a("s_lshr_b32 s19, s2, 3")
    a("s_and_b32 s23, s18, 3"); a("s_lshl_b32 s23, s23, 2"); a("s_and_b32 s24, s19, 3"); a("s_add_u32 s23, s23, s24")
    a("s_lshr_b32 s24, s18, 2"); a("s_lshl_b32 s24, s24, 3"); a("s_lshr_b32 s25, s19, 2"); a("s_add_u32 s24, s24, s25")

def k1(name="k1_kernel", opt=(), grid=512):
    a = Asm(); a.opt = opt
    a(f"s_cmp_ge_u32 s2, 512"); a("s_cbranch_scc1 {P}END"); a(f"v_mov_b32 v{TID}, v0")
    stamp(a, 0)
    a("s_load_dwordx4 s[4:7], s[0:1], 0")
    a("s_load_dwordx4 s[8:11], s[0:1], 24")
    a("s_load_dwordx2 s[12:13], s[0:1], 40")
    a("s_load_dwordx2 s[14:15], s[0:1], 64")
    a("s_load_dwordx2 s[16:17], s[0:1], 88")
    a(f"v_lshrrev_b32 v{VT}, 6, v{TID}"); a("s_nop 0"); a(f"v_readfirstlane_b32 s21, v{VT}")
    a("s_cmp_ge_u32 s2, 448"); a("s_cbranch_scc1 {P}GATE")
    a("s_cmp_ge_u32 s2, 256"); a("s_cbranch_scc1 {P}QKV")
    if "prio_h" in opt: a("s_setprio 3")
    h_like_ids(a)
    a("s_mul_i32 s44, s24, 128*1152")
    a("s_mul_i32 s26, s23, 576")
    a("s_waitcnt lgkmcnt(0)")
    srd(a, 28, 4, 0, 2048*576*2); srd(a, 32, 10, 0, 576*4608*2); srd(a, 36, 12, 0, 4608*2); srd(a, 40, 16, WS_H, 2048*4608*2)
    g = Gemm(a, 18, 1152, 4608, 3, 2 if 'pd2' in opt else 3, 2, 2, 4, True, VACC, VB, VAF, VADDR, 28, 32, 26, 44, 52)
    a("s_and_b32 s27, s21, 1"); a("s_mul_i32 s27, s27, 288"); a("s_add_u32 s27, s27, s26")
    a("s_lshr_b32 s22, s21, 1"); a("s_lshl_b32 s22, s22, 6"); a("s_lshl_b32 s25, s24, 7"); a("s_add_u32 s22, s22, s25")
    a(f"v_bfe_u32 v{VT}, v{TID}, 4, 2"); a(f"v_lshlrev_b32 v{VT}, 3, v{VT}"); a(f"v_add_u32 v{VT}, s27, v{VT}")
    for j in range(9): a.vmem(f"buffer_load_dwordx2 v[{VB+2*j}:{VB+2*j+1}], v{VT}, s[36:39], 0 offen offset:{32*j}", 'bias')
    a("s_mov_b32 s56, s44")
    g.setup(21, VT, TID)
    g.prologue_issue()
    if "notouch" not in opt:
        a("s_and_b32 s57, s23, 3"); a("s_mul_i32 s57, s57, 36864"); a("s_add_u32 s56, s56, s57"); touch_lin(a, 28, TID, VT, 56, 3, 59, 229)
        a("s_and_b32 s57, s24, 7"); a(f"s_mul_i32 s57, s57, {72*9216}"); a("s_mul_i32 s58, s23, 576"); a("s_add_u32 s57, s57, s58"); touch_rows(a, 32, TID, VT, 57, 72, 9, 9216, 229)
    a.wait_vm({'bias'})
    for j in range(9):
        for mt in range(4):
            acc = VACC + (mt*9+j)*4
            a(f"v_lshlrev_b32 v{acc}, 16, v{VB+2*j}"); a(f"v_and_b32 v{acc+1}, 0xffff0000, v{VB+2*j}")
            a(f"v_lshlrev_b32 v{acc+2}, 16, v{VB+2*j+1}"); a(f"v_and_b32 v{acc+3}, 0xffff0000, v{VB+2*j+1}")
    g.run()
    if "noepi" in opt: a("s_endpgm")
    h_epilogue(a, "".join(" " + o[4:].replace("_", " ") for o in opt if o.startswith("pol_")))
    a.lab("{P}QKV"); a.vm = []
    if "prio_q" in opt: a("s_setprio 3")
    a("s_sub_u32 s18, s2, 256")
    a("s_and_b32 s19, s18, 7"); a("s_lshr_b32 s25, s18, 3")
    a("s_lshr_b32 s24, s19, 2"); a("s_lshl_b32 s24, s24, 3"); a("s_and_b32 s23, s25, 7"); a("s_add_u32 s24, s24, s23")
    a("s_and_b32 s23, s19, 3"); a("s_mul_i32 s23, s23, 3"); a("s_lshr_b32 s25, s25, 3"); a("s_add_u32 s23, s23, s25")
    a("s_lshl_b32 s20, s24, 7"); a("s_mul_i32 s44, s24, 128*1152")
    a("s_lshl_b32 s22, s21, 5"); a("s_add_u32 s22, s22, s20")
    a("s_mul_i32 s26, s23, 288")
    a("s_waitcnt lgkmcnt(0)")
    srd(a, 28, 4, 0, 2048*576*2); srd(a, 32, 6, 0, 576*1728*2)
    srd(a, 36, 16, WS_QF, 32*QH); srd(a, 40, 16, WS_KV, 32*KH); srd(a, 48, 16, WS_MX, 4096)
    for trans, lab in ((True, "{P}QK"), (False, "{P}V")):
        if trans:
            a("s_cmp_ge_u32 s23, 8"); a("s_cbranch_scc1 {P}V")
        else:
            a.lab("{P}V"); a.vm = []
        g = Gemm(a, 18, 1152, 1728, 4, 3 if 'pd2' in opt else 4, 4, 1, 2, trans, VACC, VB, VAF, VADDR, 28, 32, 26, 44, 52)
        g.setup(21, VT, TID); g.prologue_issue()
        if "notouch" not in opt:
            a("s_and_b32 s57, s24, 7"); a(f"s_mul_i32 s57, s57, {72*3456}"); a("s_mul_i32 s58, s23, 288"); a("s_add_u32 s57, s57, s58"); touch_rows(a, 32, TID, VT, 57, 72, 5, 3456, 229)
        for i in range(72): a(f"v_mov_b32 v{VACC+i}, 0")
        g.run()
        a("s_lshr_b32 s27, s22, 5")
        if trans:
            a("s_cmp_ge_u32 s23, 4"); a("s_cbranch_scc1 {P}KEPI")
            a("s_mov_b32 s45, 0x3eae1a93")
            for i in range(72): a(f"v_mul_f32 v{VACC+i}, s45, v{VACC+i}")
            for isk in (0, 1):
                if isk:
                    a("s_endpgm"); a.lab("{P}KEPI")
                    a(f"v_mov_b32 v160, 0")
                    for i in range(0, 72, 2): a(f"v_max3_f32 v160, |v{VACC+i}|, |v{VACC+i+1}|, v160")
                HS = KH if isk else QH; TS = KT if isk else QT; sr = 40 if isk else 36
                a("s_and_b32 s46, s23, 3"); a(f"s_mul_i32 s46, s46, {8*HS}"); a(f"s_mul_i32 s47, s27, {TS}"); a("s_add_u32 s46, s46, s47")
                a("v_and_b32 v146, 15, v230"); a("v_bfe_u32 v147, v230, 4, 2"); a("v_lshlrev_b32 v147, 2, v147")
                a(f"s_mov_b32 s47, {HS}")
                for j in range(9):
                    for p in range(2):
                        a(f"v_add_u32 v148, {16*j+2*p}, v147")
                        a("v_mul_u32_u24 v149, 57, v148"); a("v_lshrrev_b32 v149, 10, v149")
                        a("v_mul_u32_u24 v150, 18, v149"); a("v_sub_u32 v148, v148, v150")
                        a("v_mul_lo_u32 v149, v149, s47")
                        a("v_lshrrev_b32 v150, 3, v148"); a("v_lshlrev_b32 v150, 9, v150"); a("v_and_b32 v151, 7, v148"); a("v_lshl_add_u32 v150, v151, 1, v150")
                        a("v_cmp_gt_u32 vcc, 16, v148")
                        a("v_mov_b32 v151, 4"); a("v_mov_b32 v152, 16"); a("v_cndmask_b32 v151, v151, v152, vcc")
                        a("v_mad_u32_u24 v149, v146, v151, v149"); a("v_add_u32 v149, v149, v150")
                        a("v_lshl_add_u32 v150, v151, 4, v149")
                        for mt in range(2):
                            acc = VACC + (mt*9+j)*4 + 2*p
                            a(f"v_cvt_pk_bf16_f32 v{153+mt}, v{acc}, v{acc+1}")
                            a.vmem(f"buffer_store_dword v{153+mt}, v{149+mt}, s[{sr}:{sr+3}], s46 offen", 'st')
                if isk:
                    wave_max(a, 160, 161)
                    a("s_lshl_b32 s46, s23, 8"); a("s_lshl_b32 s47, s27, 2"); a("s_add_u32 s46, s46, s47"); a("s_sub_u32 s46, s46, 1024")
                    a("v_mov_b32 v146, 0"); a.vmem("buffer_store_dword v160, v146, s[48:51], s46 offen", 'st')
            a("s_endpgm")
        else:
            a(f"v_mov_b32 v160, 0")
            for i in range(0, 72, 2): a(f"v_max3_f32 v160, |v{VACC+i}|, |v{VACC+i+1}|, v160")
            a("s_and_b32 s46, s23, 3"); a(f"s_mul_i32 s46, s46, {8*KH}"); a(f"s_mul_i32 s47, s27, {KT}"); a("s_add_u32 s46, s46, s47"); a("s_add_u32 s46, s46, 1152")
            a("v_and_b32 v146, 15, v230"); a("v_bfe_u32 v147, v230, 4, 1"); a("v_bfe_u32 v148, v230, 5, 1")
            a("v_mul_u32_u24 v147, 304, v147"); a("v_lshl_add_u32 v147, v148, 3, v147")
            a(f"s_mov_b32 s47, {KH}")
            for j in range(9):
                a(f"v_add_u32 v148, {16*j}, v146"); a("v_mul_u32_u24 v149, 57, v148"); a("v_lshrrev_b32 v149, 10, v149")
                a("v_mul_u32_u24 v150, 18, v149"); a("v_sub_u32 v148, v148, v150"); a("v_mul_lo_u32 v149, v149, s47")
                a("v_lshl_add_u32 v149, v148, 4, v149"); a("v_add_u32 v149, v149, v147")
                for mt in range(2):
                    acc = VACC + (mt*9+j)*4; d = 152 + 2*mt
                    a(f"v_cvt_pk_bf16_f32 v{d}, v{acc}, v{acc+1}"); a(f"v_cvt_pk_bf16_f32 v{d+1}, v{acc+2}, v{acc+3}")
                    a.vmem(f"buffer_store_dwordx2 v[{d}:{d+1}], v149, s[40:43], s46 offen offset:{608*mt}", 'st')
                a("s_nop 0")
            a("v_and_b32 v146, 63, v230"); a("v_bfe_u32 v147, v146, 2, 3"); a("v_mul_lo_u32 v147, v147, s47"); a("v_and_b32 v148, 3, v146")
            a("v_mul_u32_u24 v148, 304, v148"); a("v_add_u32 v147, v147, v148"); a("v_add_u32 v147, 288, v147")
            for i in range(4): a(f"v_mov_b32 v{152+i}, 0x3f803f80")
            a.vmem("buffer_store_dwordx4 v[152:155], v147, s[40:43], s46 offen", 'st')
            wave_max(a, 160, 161)
            a("s_lshl_b32 s46, s23, 8"); a("s_lshl_b32 s47, s27, 2"); a("s_add_u32 s46, s46, s47"); a("s_sub_u32 s46, s46, 1024")
            a("v_mov_b32 v146, 0"); a.vmem("buffer_store_dword v160, v146, s[48:51], s46 offen", 'st')
            a("s_endpgm")
    a.lab("{P}GATE"); a.vm = []
    a("s_sub_u32 s18, s2, 448"); a("s_lshl_b32 s18, s18, 5")
    a("s_waitcnt lgkmcnt(0)")
    srd(a, 28, 4, 0, 2048*576*2); srd(a, 32, 14, 0, 1152); srd(a, 36, 16, WS_G, 8192)
    a("v_lshrrev_b32 v146, 3, v230"); a("v_add_u32 v146, s18, v146")
    a("v_and_b32 v147, 7, v230"); a("v_lshlrev_b32 v147, 4, v147")
    a("v_mul_u32_u24 v148, 1152, v146"); a("v_add_u32 v148, v148, v147")
    for i in range(9):
        a.vmem(f"buffer_load_dwordx4 v[{4*i}:{4*i+3}], v148, s[28:31], 0 offen offset:{128*i}", 'x')
        a.vmem(f"buffer_load_dwordx4 v[{36+4*i}:{36+4*i+3}], v147, s[32:35], 0 offen offset:{128*i}", 'x')
    a.wait_vm({'x'})
    a("v_mov_b32 v80, 0"); a("v_mov_b32 v81, 0")
    for i in range(36):
        a(f"v_lshlrev_b32 v72, 16, v{i}"); a(f"v_lshlrev_b32 v73, 16, v{36+i}"); a("v_fmac_f32 v80, v72, v73")
        a(f"v_and_b32 v74, 0xffff0000, v{i}"); a(f"v_and_b32 v75, 0xffff0000, v{36+i}"); a("v_fmac_f32 v81, v74, v75")
    a("v_add_f32 v80, v80, v81")
    for c in ("quad_perm:[1,0,3,2]", "quad_perm:[2,3,0,1]", "row_half_mirror"):
        a("s_nop 1"); a(f"v_add_f32_dpp v80, v80, v80 {c} row_mask:0xf bank_mask:0xf")
    a("v_mul_f32 v80, 0xbfb8aa3b, v80"); a("v_exp_f32 v80, v80"); a("s_nop 0"); a("v_add_f32 v80, 1.0, v80"); a("v_rcp_f32 v80, v80")
    a("v_lshlrev_b32 v146, 2, v146"); a("s_nop 0")
    a.vmem("buffer_store_dword v80, v146, s[36:39], 0 offen", 'st')
    if "gtouch" in opt:
        a("s_load_dwordx2 s[60:61], s[0:1], 48"); a("s_load_dwordx2 s[62:63], s[0:1], 16"); a("s_waitcnt lgkmcnt(0)")
        srd(a, 40, 60, 0, 4608*576*2); srd(a, 44, 62, 0, 576*576*2)
        a("s_lshl_b32 s18, s18, 10")
        a("v_lshlrev_b32 v82, 7, v230"); a("v_add_u32 v82, s18, v82")
        for i in range(3):
            a(f"v_add_u32 v83, {i*16384*128}, v82"); a(f"buffer_load_dword v{84+i}, v83, s[40:43], 0 offen")
        a("buffer_load_dword v87, v82, s[44:47], 0 offen")
        a("s_waitcnt vmcnt(0)")
    a.lab("{P}END"); a("s_endpgm")
    return name, a.text().replace("{P}", name + "_"), kdesc(name, 232), (grid, 256, 79872)
```

```python
import sys
from gen_core import *
import gen_k1
X = tuple(sys.argv[2:])
P1 = () if "p1none" in X else (("pol_nt",) if "p1nt" in X else (("pol_sc0_sc1",) if "p1sc01" in X else ("pol_sc1",)))
ks = [gen_k1.k1(opt=P1 + ("notouch",) + X)]
try:
    import gen_k2; ks += [gen_k2.k2(opt=tuple(o for o in X if not (o == 'noroll' and 'k2roll' in X))), gen_k2.k3()]
except ImportError: pass
hdr = open(f"cdna_kernels/{NAME}.s.ref").read().split("; Override")[0]
out = hdr + "".join(f"; @launch kernel={n} grid=({g},1,1) block=({b},1,1) lds={l}\n" for n, _, _, (g, b, l) in ks)
out += '.amdgcn_target "amdgcn-amd-amdhsa--gfx950"\n.text\n' + "".join(khead(n) + t for n, t, _, _ in ks) + '.section .rodata,"a"\n' + "".join(d for _, _, d, _ in ks)
open(sys.argv[1], "w").write(out)
```

```python
from gen_core import *
VACC=0; VB=144; VAF=180; VADDR=212; VT=221; TID=230
def wave_max(a, v, t):
    for c in ("row_ror:8","row_ror:4","row_ror:2","row_ror:1"):
        a("s_nop 1"); a(f"v_max_f32_dpp v{v}, v{v}, v{v} {c} row_mask:0xf bank_mask:0xf")
    a(f"v_mov_b32 v{t}, v{v}"); a("s_nop 1"); a(f"v_permlane16_swap_b32 v{t}, v{v}"); a("s_nop 1"); a(f"v_max_f32 v{v}, v{v}, v{t}")
    a(f"v_mov_b32 v{t}, v{v}"); a("s_nop 1"); a(f"v_permlane32_swap_b32 v{t}, v{v}"); a("s_nop 1"); a(f"v_max_f32 v{v}, v{v}, v{t}")

def h_epilogue(a, pol=" sc1"):
    t = VT
    for i in range(144): a(f"v_max_f32 v{i}, 0, v{i}")
    for i in range(0, 144, 2): a(f"v_pk_mul_f32 v[{i}:{i+1}], v[{i}:{i+1}], v[{i}:{i+1}]")
    a(f"v_and_b32 v{t}, 15, v{TID}"); a(f"v_bfe_u32 v{t+1}, v{TID}, 3, 1"); a(f"v_mul_u32_u24 v{t+1}, 3, v{t+1}")
    a(f"v_bfe_u32 v{t+2}, v{TID}, 4, 1"); a(f"v_bfe_u32 v{t+3}, v{TID}, 5, 1")
    a(f"s_lshr_b32 s45, s21, 1"); a("s_lshl_b32 s45, s45, 12")
    a(f"v_lshlrev_b32 v{t}, 6, v{t}"); a(f"v_add_u32 v{t}, s45, v{t}")
    a(f"v_lshl_add_u32 v{t+4}, v{t+2}, 1, v{t+3}"); a(f"v_xor_b32 v{t+4}, v{t+4}, v{t+1}"); a(f"v_lshl_add_u32 v{t+4}, v{t+4}, 4, v{t}")
    a("s_and_b32 s46, s21, 1"); a("s_lshl_b32 s47, s46, 1")
    a(f"v_add_u32 v{t+5}, s47, v{t+3}"); a(f"v_xor_b32 v{t+5}, v{t+5}, v{t+1}"); a(f"v_lshl_add_u32 v{t+5}, v{t+5}, 4, v{t}"); a(f"v_lshl_add_u32 v{t+5}, v{t+2}, 3, v{t+5}")
    a("s_mul_i32 s45, s24, 144"); a("s_mul_i32 s47, s23, 9"); a("s_add_u32 s45, s45, s47"); a("s_lshl_b32 s45, s45, 13")
    a("s_cmp_eq_u32 s46, 1"); a("s_cbranch_scc1 {P}HE1")
    for wn in range(2):
        if wn: a.lab("{P}HE1")
        n = 0
        for jp in range(5):
            if jp < 4: j = 2*jp + wn; kk = jp + 5*wn
            else: j = 0 if wn else 8; kk = 4
            a(f"s_add_u32 s47, s45, {kk*8192}")
            for mt in range(4):
                acc = VACC + (mt*9+j)*4; d = VB + 4*(n % 16); n += 1
                a(f"v_cvt_pk_bf16_f32 v{d}, v{acc}, v{acc+1}"); a(f"v_cvt_pk_bf16_f32 v{d+1}, v{acc+2}, v{acc+3}")
                if jp < 4:
                    a(f"v_cvt_pk_bf16_f32 v{d+2}, v{acc+4}, v{acc+5}"); a(f"v_cvt_pk_bf16_f32 v{d+3}, v{acc+6}, v{acc+7}")
                    a("s_nop 1"); a(f"v_permlane16_swap_b32 v{d}, v{d+2}"); a(f"v_permlane16_swap_b32 v{d+1}, v{d+3}")
                    a.vmem(f"buffer_store_dwordx4 v[{d}:{d+3}], v{t+4}, s[40:43], s47 offen offset:{1024*mt}{pol}", 'st')
                else:
                    a.vmem(f"buffer_store_dwordx2 v[{d}:{d+1}], v{t+5}, s[40:43], s47 offen offset:{1024*mt}{pol}", 'st')
        stamp(a, 3); stamp_out(a, 4, [0, 100, 255] if wn == 0 else [], VT)
        a("s_endpgm")

def h_like_ids(a):
    a("s_and_b32 s18, s2, 7"); a("s_lshr_b32 s19, s2, 3")
    a("s_and_b32 s23, s18, 3"); a("s_lshl_b32 s23, s23, 2"); a("s_and_b32 s24, s19, 3"); a("s_add_u32 s23, s23, s24")
    a("s_lshr_b32 s24, s18, 2"); a("s_lshl_b32 s24, s24, 3"); a("s_lshr_b32 s25, s19, 2"); a("s_add_u32 s24, s24, s25")

def k1(name="k1_kernel", opt=(), grid=512):
    a = Asm(); a.opt = opt
    a(f"s_cmp_ge_u32 s2, 512"); a("s_cbranch_scc1 {P}END"); a(f"v_mov_b32 v{TID}, v0")
    stamp(a, 0)
    a("s_load_dwordx4 s[4:7], s[0:1], 0")
    a("s_load_dwordx4 s[8:11], s[0:1], 24")
    a("s_load_dwordx2 s[12:13], s[0:1], 40")
    a("s_load_dwordx2 s[14:15], s[0:1], 64")
    a("s_load_dwordx2 s[16:17], s[0:1], 88")
    a(f"v_lshrrev_b32 v{VT}, 6, v{TID}"); a("s_nop 0"); a(f"v_readfirstlane_b32 s21, v{VT}")
    a("s_cmp_ge_u32 s2, 448"); a("s_cbranch_scc1 {P}GATE")
    a("s_cmp_ge_u32 s2, 256"); a("s_cbranch_scc1 {P}QKV")
    if "prio_h" in opt: a("s_setprio 3")
    h_like_ids(a)
    a("s_mul_i32 s44, s24, 128*1152")
    a("s_mul_i32 s26, s23, 576")
    a("s_waitcnt lgkmcnt(0)")
    srd(a, 28, 4, 0, 2048*576*2); srd(a, 32, 10, 0, 576*4608*2); srd(a, 36, 12, 0, 4608*2); srd(a, 40, 16, WS_H, 2048*4608*2)
    g = Gemm(a, 18, 1152, 4608, 3, 2 if 'pd2' in opt else 3, 2, 2, 4, True, VACC, VB, VAF, VADDR, 28, 32, 26, 44, 52)
    a("s_and_b32 s27, s21, 1"); a("s_mul_i32 s27, s27, 288"); a("s_add_u32 s27, s27, s26")
    a("s_lshr_b32 s22, s21, 1"); a("s_lshl_b32 s22, s22, 6"); a("s_lshl_b32 s25, s24, 7"); a("s_add_u32 s22, s22, s25")
    a(f"v_bfe_u32 v{VT}, v{TID}, 4, 2"); a(f"v_lshlrev_b32 v{VT}, 3, v{VT}"); a(f"v_add_u32 v{VT}, s27, v{VT}")
    for j in range(9): a.vmem(f"buffer_load_dwordx2 v[{VB+2*j}:{VB+2*j+1}], v{VT}, s[36:39], 0 offen offset:{32*j}", 'bias')
    a("s_mov_b32 s56, s44")
    g.setup(21, VT, TID)
    g.prologue_issue()
    if "notouch" not in opt:
        a("s_and_b32 s57, s23, 3"); a("s_mul_i32 s57, s57, 36864"); a("s_add_u32 s56, s56, s57"); touch_lin(a, 28, TID, VT, 56, 3, 59, 229)
        a("s_and_b32 s57, s24, 7"); a(f"s_mul_i32 s57, s57, {72*9216}"); a("s_mul_i32 s58, s23, 576"); a("s_add_u32 s57, s57, s58"); touch_rows(a, 32, TID, VT, 57, 72, 9, 9216, 229)
    a.wait_vm({'bias'})
    for j in range(9):
        for mt in range(4):
            acc = VACC + (mt*9+j)*4
            a(f"v_lshlrev_b32 v{acc}, 16, v{VB+2*j}"); a(f"v_and_b32 v{acc+1}, 0xffff0000, v{VB+2*j}")
            a(f"v_lshlrev_b32 v{acc+2}, 16, v{VB+2*j+1}"); a(f"v_and_b32 v{acc+3}, 0xffff0000, v{VB+2*j+1}")
    g.run()
    if "noepi" in opt: a("s_endpgm")
    h_epilogue(a, "".join(" " + o[4:].replace("_", " ") for o in opt if o.startswith("pol_")))
    a.lab("{P}QKV"); a.vm = []
    if "prio_q" in opt: a("s_setprio 3")
    a("s_sub_u32 s18, s2, 256")
    a("s_and_b32 s19, s18, 7"); a("s_lshr_b32 s25, s18, 3")
    a("s_lshr_b32 s24, s19, 2"); a("s_lshl_b32 s24, s24, 3"); a("s_and_b32 s23, s25, 7"); a("s_add_u32 s24, s24, s23")
    a("s_and_b32 s23, s19, 3"); a("s_mul_i32 s23, s23, 3"); a("s_lshr_b32 s25, s25, 3"); a("s_add_u32 s23, s23, s25")
    a("s_lshl_b32 s20, s24, 7"); a("s_mul_i32 s44, s24, 128*1152")
    a("s_lshl_b32 s22, s21, 5"); a("s_add_u32 s22, s22, s20")
    a("s_mul_i32 s26, s23, 288")
    a("s_waitcnt lgkmcnt(0)")
    srd(a, 28, 4, 0, 2048*576*2); srd(a, 32, 6, 0, 576*1728*2)
    srd(a, 36, 16, WS_QF, 32*QH); srd(a, 40, 16, WS_KV, 32*KH); srd(a, 48, 16, WS_MX, 4096)
    for trans, lab in ((True, "{P}QK"), (False, "{P}V")):
        if trans:
            a("s_cmp_ge_u32 s23, 8"); a("s_cbranch_scc1 {P}V")
        else:
            a.lab("{P}V"); a.vm = []
        g = Gemm(a, 18, 1152, 1728, 4, 3 if 'pd2' in opt else 4, 4, 1, 2, trans, VACC, VB, VAF, VADDR, 28, 32, 26, 44, 52)
        g.setup(21, VT, TID); g.prologue_issue()
        if "notouch" not in opt:
            a("s_and_b32 s57, s24, 7"); a(f"s_mul_i32 s57, s57, {72*3456}"); a("s_mul_i32 s58, s23, 288"); a("s_add_u32 s57, s57, s58"); touch_rows(a, 32, TID, VT, 57, 72, 5, 3456, 229)
        for i in range(72): a(f"v_mov_b32 v{VACC+i}, 0")
        g.run()
        a("s_lshr_b32 s27, s22, 5")
        if trans:
            a("s_cmp_ge_u32 s23, 4"); a("s_cbranch_scc1 {P}KEPI")
            a("s_mov_b32 s45, 0x3eae1a93")
            for i in range(72): a(f"v_mul_f32 v{VACC+i}, s45, v{VACC+i}")
            for isk in (0, 1):
                if isk:
                    a("s_endpgm"); a.lab("{P}KEPI")
                    a(f"v_mov_b32 v160, 0")
                    for i in range(0, 72, 2): a(f"v_max3_f32 v160, |v{VACC+i}|, |v{VACC+i+1}|, v160")
                HS = KH if isk else QH; TS = KT if isk else QT; sr = 40 if isk else 36
                a("s_and_b32 s46, s23, 3"); a(f"s_mul_i32 s46, s46, {8*HS}"); a(f"s_mul_i32 s47, s27, {TS}"); a("s_add_u32 s46, s46, s47")
                a("v_and_b32 v146, 15, v230"); a("v_bfe_u32 v147, v230, 4, 2"); a("v_lshlrev_b32 v147, 2, v147")
                a(f"s_mov_b32 s47, {HS}")
                for j in range(9):
                    for p in range(2):
                        a(f"v_add_u32 v148, {16*j+2*p}, v147")
                        a("v_mul_u32_u24 v149, 57, v148"); a("v_lshrrev_b32 v149, 10, v149")
                        a("v_mul_u32_u24 v150, 18, v149"); a("v_sub_u32 v148, v148, v150")
                        a("v_mul_lo_u32 v149, v149, s47")
                        a("v_lshrrev_b32 v150, 3, v148"); a("v_lshlrev_b32 v150, 9, v150"); a("v_and_b32 v151, 7, v148"); a("v_lshl_add_u32 v150, v151, 1, v150")
                        a("v_cmp_gt_u32 vcc, 16, v148")
                        a("v_mov_b32 v151, 4"); a("v_mov_b32 v152, 16"); a("v_cndmask_b32 v151, v151, v152, vcc")
                        a("v_mad_u32_u24 v149, v146, v151, v149"); a("v_add_u32 v149, v149, v150")
                        a("v_lshl_add_u32 v150, v151, 4, v149")
                        for mt in range(2):
                            acc = VACC + (mt*9+j)*4 + 2*p
                            a(f"v_cvt_pk_bf16_f32 v{153+mt}, v{acc}, v{acc+1}")
                            a.vmem(f"buffer_store_dword v{153+mt}, v{149+mt}, s[{sr}:{sr+3}], s46 offen", 'st')
                if isk:
                    wave_max(a, 160, 161)
                    a("s_lshl_b32 s46, s23, 8"); a("s_lshl_b32 s47, s27, 2"); a("s_add_u32 s46, s46, s47"); a("s_sub_u32 s46, s46, 1024")
                    a("v_mov_b32 v146, 0"); a.vmem("buffer_store_dword v160, v146, s[48:51], s46 offen", 'st')
            a("s_endpgm")
        else:
            a(f"v_mov_b32 v160, 0")
            for i in range(0, 72, 2): a(f"v_max3_f32 v160, |v{VACC+i}|, |v{VACC+i+1}|, v160")
            a("s_and_b32 s46, s23, 3"); a(f"s_mul_i32 s46, s46, {8*KH}"); a(f"s_mul_i32 s47, s27, {KT}"); a("s_add_u32 s46, s46, s47"); a("s_add_u32 s46, s46, 1152")
            a("v_and_b32 v146, 15, v230"); a("v_bfe_u32 v147, v230, 4, 1"); a("v_bfe_u32 v148, v230, 5, 1")
            a("v_mul_u32_u24 v147, 304, v147"); a("v_lshl_add_u32 v147, v148, 3, v147")
            a(f"s_mov_b32 s47, {KH}")
            for j in range(9):
                a(f"v_add_u32 v148, {16*j}, v146"); a("v_mul_u32_u24 v149, 57, v148"); a("v_lshrrev_b32 v149, 10, v149")
                a("v_mul_u32_u24 v150, 18, v149"); a("v_sub_u32 v148, v148, v150"); a("v_mul_lo_u32 v149, v149, s47")
                a("v_lshl_add_u32 v149, v148, 4, v149"); a("v_add_u32 v149, v149, v147")
                for mt in range(2):
                    acc = VACC + (mt*9+j)*4; d = 152 + 2*mt
                    a(f"v_cvt_pk_bf16_f32 v{d}, v{acc}, v{acc+1}"); a(f"v_cvt_pk_bf16_f32 v{d+1}, v{acc+2}, v{acc+3}")
                    a.vmem(f"buffer_store_dwordx2 v[{d}:{d+1}], v149, s[40:43], s46 offen offset:{608*mt}", 'st')
                a("s_nop 0")
            a("v_and_b32 v146, 63, v230"); a("v_bfe_u32 v147, v146, 2, 3"); a("v_mul_lo_u32 v147, v147, s47"); a("v_and_b32 v148, 3, v146")
            a("v_mul_u32_u24 v148, 304, v148"); a("v_add_u32 v147, v147, v148"); a("v_add_u32 v147, 288, v147")
            for i in range(4): a(f"v_mov_b32 v{152+i}, 0x3f803f80")
            a.vmem("buffer_store_dwordx4 v[152:155], v147, s[40:43], s46 offen", 'st')
            wave_max(a, 160, 161)
            a("s_lshl_b32 s46, s23, 8"); a("s_lshl_b32 s47, s27, 2"); a("s_add_u32 s46, s46, s47"); a("s_sub_u32 s46, s46, 1024")
            a("v_mov_b32 v146, 0"); a.vmem("buffer_store_dword v160, v146, s[48:51], s46 offen", 'st')
            a("s_endpgm")
    a.lab("{P}GATE"); a.vm = []
    a("s_sub_u32 s18, s2, 448"); a("s_lshl_b32 s18, s18, 5")
    a("s_waitcnt lgkmcnt(0)")
    srd(a, 28, 4, 0, 2048*576*2); srd(a, 32, 14, 0, 1152); srd(a, 36, 16, WS_G, 8192)
    a("v_lshrrev_b32 v146, 3, v230"); a("v_add_u32 v146, s18, v146")
    a("v_and_b32 v147, 7, v230"); a("v_lshlrev_b32 v147, 4, v147")
    a("v_mul_u32_u24 v148, 1152, v146"); a("v_add_u32 v148, v148, v147")
    for i in range(9):
        a.vmem(f"buffer_load_dwordx4 v[{4*i}:{4*i+3}], v148, s[28:31], 0 offen offset:{128*i}", 'x')
        a.vmem(f"buffer_load_dwordx4 v[{36+4*i}:{36+4*i+3}], v147, s[32:35], 0 offen offset:{128*i}", 'x')
    def gt(sr, size, sh, vd):
        a(f"v_lshlrev_b32 v82, {sh}, v230"); a(f"s_lshl_b32 s19, s18, {3+sh}"); a("v_add_u32 v82, s19, v82")
        n = (size + (16384 << sh) - 1) // (16384 << sh)
        for i in range(n):
            if i: a(f"v_add_u32 v82, {16384 << sh}, v82")
            a.vmem(f"buffer_load_dword v{vd+i}, v82, s[{sr}:{sr+3}], 0 offen", 'gt')
    if "gtouch" in opt: a("s_load_dwordx2 s[60:61], s[0:1], 48"); a("s_load_dwordx2 s[62:63], s[0:1], 16")
    if "gtouch2" in opt:
        sh = 6 if "gt64" in opt else 7
        srd(a, 48, 10, 0, 576*4608*2); srd(a, 52, 6, 0, 576*1728*2)
        gt(48, 576*4608*2, sh, 100); gt(52, 576*1728*2, sh, 108)
    a.wait_vm({'x'})
    a("v_mov_b32 v80, 0"); a("v_mov_b32 v81, 0")
    for i in range(36):
        a(f"v_lshlrev_b32 v72, 16, v{i}"); a(f"v_lshlrev_b32 v73, 16, v{36+i}"); a("v_fmac_f32 v80, v72, v73")
        a(f"v_and_b32 v74, 0xffff0000, v{i}"); a(f"v_and_b32 v75, 0xffff0000, v{36+i}"); a("v_fmac_f32 v81, v74, v75")
    a("v_add_f32 v80, v80, v81")
    for c in ("quad_perm:[1,0,3,2]", "quad_perm:[2,3,0,1]", "row_half_mirror"):
        a("s_nop 1"); a(f"v_add_f32_dpp v80, v80, v80 {c} row_mask:0xf bank_mask:0xf")
    a("v_mul_f32 v80, 0xbfb8aa3b, v80"); a("v_exp_f32 v80, v80"); a("s_nop 0"); a("v_add_f32 v80, 1.0, v80"); a("v_rcp_f32 v80, v80")
    a("v_lshlrev_b32 v146, 2, v146"); a("s_nop 0")
    a.vmem("buffer_store_dword v80, v146, s[36:39], 0 offen", 'st')
    if "gtouch" in opt:
        sh = 6 if "gt64" in opt else 7
        a("s_waitcnt lgkmcnt(0)")
        srd(a, 40, 60, 0, 4608*576*2); srd(a, 44, 62, 0, 576*576*2)
        gt(40, 4608*576*2, sh, 84); gt(44, 576*576*2, sh, 92)
        a("s_waitcnt vmcnt(0)")
    a.lab("{P}END"); a("s_endpgm")
    return name, a.text().replace("{P}", name + "_"), kdesc(name, 232), (grid, 256, 79872)
```

```python
from gen_core import *
VACC=0; VB=144; VAF=180; VADDR=212; VT=221; TID=230
def wave_max(a, v, t):
    for c in ("row_ror:8","row_ror:4","row_ror:2","row_ror:1"):
        a("s_nop 1"); a(f"v_max_f32_dpp v{v}, v{v}, v{v} {c} row_mask:0xf bank_mask:0xf")
    a(f"v_mov_b32 v{t}, v{v}"); a("s_nop 1"); a(f"v_permlane16_swap_b32 v{t}, v{v}"); a("s_nop 1"); a(f"v_max_f32 v{v}, v{v}, v{t}")
    a(f"v_mov_b32 v{t}, v{v}"); a("s_nop 1"); a(f"v_permlane32_swap_b32 v{t}, v{v}"); a("s_nop 1"); a(f"v_max_f32 v{v}, v{v}, v{t}")

def h_epilogue(a, pol=" sc1"):
    t = VT
    for i in range(144): a(f"v_max_f32 v{i}, 0, v{i}")
    for i in range(0, 144, 2): a(f"v_pk_mul_f32 v[{i}:{i+1}], v[{i}:{i+1}], v[{i}:{i+1}]")
    a(f"v_and_b32 v{t}, 15, v{TID}"); a(f"v_bfe_u32 v{t+1}, v{TID}, 3, 1"); a(f"v_mul_u32_u24 v{t+1}, 3, v{t+1}")
    a(f"v_bfe_u32 v{t+2}, v{TID}, 4, 1"); a(f"v_bfe_u32 v{t+3}, v{TID}, 5, 1")
    a(f"s_lshr_b32 s45, s21, 1"); a("s_lshl_b32 s45, s45, 12")
    a(f"v_lshlrev_b32 v{t}, 6, v{t}"); a(f"v_add_u32 v{t}, s45, v{t}")
    a(f"v_lshl_add_u32 v{t+4}, v{t+2}, 1, v{t+3}"); a(f"v_xor_b32 v{t+4}, v{t+4}, v{t+1}"); a(f"v_lshl_add_u32 v{t+4}, v{t+4}, 4, v{t}")
    a("s_and_b32 s46, s21, 1"); a("s_lshl_b32 s47, s46, 1")
    a(f"v_add_u32 v{t+5}, s47, v{t+3}"); a(f"v_xor_b32 v{t+5}, v{t+5}, v{t+1}"); a(f"v_lshl_add_u32 v{t+5}, v{t+5}, 4, v{t}"); a(f"v_lshl_add_u32 v{t+5}, v{t+2}, 3, v{t+5}")
    a("s_mul_i32 s45, s24, 144"); a("s_mul_i32 s47, s23, 9"); a("s_add_u32 s45, s45, s47"); a("s_lshl_b32 s45, s45, 13")
    a("s_cmp_eq_u32 s46, 1"); a("s_cbranch_scc1 {P}HE1")
    for wn in range(2):
        if wn: a.lab("{P}HE1")
        n = 0
        for jp in range(5):
            if jp < 4: j = 2*jp + wn; kk = jp + 5*wn
            else: j = 0 if wn else 8; kk = 4
            a(f"s_add_u32 s47, s45, {kk*8192}")
            for mt in range(4):
                acc = VACC + (mt*9+j)*4; d = VB + 4*(n % 16); n += 1
                a(f"v_cvt_pk_bf16_f32 v{d}, v{acc}, v{acc+1}"); a(f"v_cvt_pk_bf16_f32 v{d+1}, v{acc+2}, v{acc+3}")
                if jp < 4:
                    a(f"v_cvt_pk_bf16_f32 v{d+2}, v{acc+4}, v{acc+5}"); a(f"v_cvt_pk_bf16_f32 v{d+3}, v{acc+6}, v{acc+7}")
                    a("s_nop 1"); a(f"v_permlane16_swap_b32 v{d}, v{d+2}"); a(f"v_permlane16_swap_b32 v{d+1}, v{d+3}")
                    a.vmem(f"buffer_store_dwordx4 v[{d}:{d+3}], v{t+4}, s[40:43], s47 offen offset:{1024*mt}{pol}", 'st')
                else:
                    a.vmem(f"buffer_store_dwordx2 v[{d}:{d+1}], v{t+5}, s[40:43], s47 offen offset:{1024*mt}{pol}", 'st')
        stamp(a, 3); stamp_out(a, 4, [0, 100, 255] if wn == 0 else [], VT)
        a("s_endpgm")

def h_like_ids(a):
    a("s_and_b32 s18, s2, 7"); a("s_lshr_b32 s19, s2, 3")
    a("s_and_b32 s23, s18, 3"); a("s_lshl_b32 s23, s23, 2"); a("s_and_b32 s24, s19, 3"); a("s_add_u32 s23, s23, s24")
    a("s_lshr_b32 s24, s18, 2"); a("s_lshl_b32 s24, s24, 3"); a("s_lshr_b32 s25, s19, 2"); a("s_add_u32 s24, s24, s25")

def k1(name="k1_kernel", opt=(), grid=512):
    a = Asm(); a.opt = opt
    a(f"s_cmp_ge_u32 s2, 512"); a("s_cbranch_scc1 {P}END"); a(f"v_mov_b32 v{TID}, v0")
    stamp(a, 0)
    a("s_load_dwordx4 s[4:7], s[0:1], 0")
    a("s_load_dwordx4 s[8:11], s[0:1], 24")
    a("s_load_dwordx2 s[12:13], s[0:1], 40")
    a("s_load_dwordx2 s[14:15], s[0:1], 64")
    a("s_load_dwordx2 s[16:17], s[0:1], 88")
    a(f"v_lshrrev_b32 v{VT}, 6, v{TID}"); a("s_nop 0"); a(f"v_readfirstlane_b32 s21, v{VT}")
    a("s_cmp_ge_u32 s2, 448"); a("s_cbranch_scc1 {P}GATE")
    a("s_cmp_ge_u32 s2, 256"); a("s_cbranch_scc1 {P}QKV")
    if "prio_h" in opt: a("s_setprio 3")
    h_like_ids(a)
    a("s_mul_i32 s44, s24, 128*1152")
    a("s_mul_i32 s26, s23, 576")
    a("s_waitcnt lgkmcnt(0)")
    srd(a, 28, 4, 0, 2048*576*2); srd(a, 32, 10, 0, 576*4608*2); srd(a, 36, 12, 0, 4608*2); srd(a, 40, 16, WS_H, 2048*4608*2)
    g = Gemm(a, 18, 1152, 4608, 3, 2 if 'pd2' in opt else 3, 2, 2, 4, True, VACC, VB, VAF, VADDR, 28, 32, 26, 44, 52)
    a("s_and_b32 s27, s21, 1"); a("s_mul_i32 s27, s27, 288"); a("s_add_u32 s27, s27, s26")
    a("s_lshr_b32 s22, s21, 1"); a("s_lshl_b32 s22, s22, 6"); a("s_lshl_b32 s25, s24, 7"); a("s_add_u32 s22, s22, s25")
    a(f"v_bfe_u32 v{VT}, v{TID}, 4, 2"); a(f"v_lshlrev_b32 v{VT}, 3, v{VT}"); a(f"v_add_u32 v{VT}, s27, v{VT}")
    for j in range(9): a.vmem(f"buffer_load_dwordx2 v[{VB+2*j}:{VB+2*j+1}], v{VT}, s[36:39], 0 offen offset:{32*j}", 'bias')
    a("s_mov_b32 s56, s44")
    g.setup(21, VT, TID)
    g.prologue_issue()
    if "atouch" in opt:
        a(f"v_lshlrev_b32 v228, 7, v{TID}"); a("s_lshl_b32 s57, s2, 15"); a("v_add_u32 v228, s57, v228")
        a.vmem("buffer_load_dword v229, v228, s[32:35], 0 offen", 'touch')
    if "notouch" not in opt:
        a("s_and_b32 s57, s23, 3"); a("s_mul_i32 s57, s57, 36864"); a("s_add_u32 s56, s56, s57"); touch_lin(a, 28, TID, VT, 56, 3, 59, 229)
        a("s_and_b32 s57, s24, 7"); a(f"s_mul_i32 s57, s57, {72*9216}"); a("s_mul_i32 s58, s23, 576"); a("s_add_u32 s57, s57, s58"); touch_rows(a, 32, TID, VT, 57, 72, 9, 9216, 229)
    a.wait_vm({'bias'})
    for j in range(9):
        for mt in range(4):
            acc = VACC + (mt*9+j)*4
            a(f"v_lshlrev_b32 v{acc}, 16, v{VB+2*j}"); a(f"v_and_b32 v{acc+1}, 0xffff0000, v{VB+2*j}")
            a(f"v_lshlrev_b32 v{acc+2}, 16, v{VB+2*j+1}"); a(f"v_and_b32 v{acc+3}, 0xffff0000, v{VB+2*j+1}")
    g.run()
    if "noepi" in opt: a("s_endpgm")
    h_epilogue(a, "".join(" " + o[4:].replace("_", " ") for o in opt if o.startswith("pol_")))
    a.lab("{P}QKV"); a.vm = []
    if "prio_q" in opt: a("s_setprio 3")
    a("s_sub_u32 s18, s2, 256")
    a("s_and_b32 s19, s18, 7"); a("s_lshr_b32 s25, s18, 3")
    a("s_lshr_b32 s24, s19, 2"); a("s_lshl_b32 s24, s24, 3"); a("s_and_b32 s23, s25, 7"); a("s_add_u32 s24, s24, s23")
    a("s_and_b32 s23, s19, 3"); a("s_mul_i32 s23, s23, 3"); a("s_lshr_b32 s25, s25, 3"); a("s_add_u32 s23, s23, s25")
    a("s_lshl_b32 s20, s24, 7"); a("s_mul_i32 s44, s24, 128*1152")
    a("s_lshl_b32 s22, s21, 5"); a("s_add_u32 s22, s22, s20")
    a("s_mul_i32 s26, s23, 288")
    a("s_waitcnt lgkmcnt(0)")
    srd(a, 28, 4, 0, 2048*576*2); srd(a, 32, 6, 0, 576*1728*2)
    srd(a, 36, 16, WS_QF, 32*QH); srd(a, 40, 16, WS_KV, 32*KH); srd(a, 48, 16, WS_MX, 4096)
    for trans, lab in ((True, "{P}QK"), (False, "{P}V")):
        if trans:
            a("s_cmp_ge_u32 s23, 8"); a("s_cbranch_scc1 {P}V")
        else:
            a.lab("{P}V"); a.vm = []
        g = Gemm(a, 18, 1152, 1728, 4, 3 if 'pd2' in opt else 4, 4, 1, 2, trans, VACC, VB, VAF, VADDR, 28, 32, 26, 44, 52)
        g.setup(21, VT, TID); g.prologue_issue()
        if "atouch" in opt:
            a(f"v_lshlrev_b32 v228, 7, v{TID}"); a("s_sub_u32 s57, s2, 256"); a("s_lshl_b32 s57, s57, 15"); a("v_add_u32 v228, s57, v228")
            a.vmem("buffer_load_dword v229, v228, s[32:35], 0 offen", 'touch')
            a(f"v_subrev_u32 v228, {15552*128}, v228")
            a.vmem("buffer_load_dword v229, v228, s[28:31], 0 offen", 'touch')
        if "notouch" not in opt:
            a("s_and_b32 s57, s24, 7"); a(f"s_mul_i32 s57, s57, {72*3456}"); a("s_mul_i32 s58, s23, 288"); a("s_add_u32 s57, s57, s58"); touch_rows(a, 32, TID, VT, 57, 72, 5, 3456, 229)
        for i in range(72): a(f"v_mov_b32 v{VACC+i}, 0")
        g.run()
        a("s_lshr_b32 s27, s22, 5")
        if trans:
            a("s_cmp_ge_u32 s23, 4"); a("s_cbranch_scc1 {P}KEPI")
            a("s_mov_b32 s45, 0x3eae1a93")
            for i in range(72): a(f"v_mul_f32 v{VACC+i}, s45, v{VACC+i}")
            for isk in (0, 1):
                if isk:
                    a("s_endpgm"); a.lab("{P}KEPI")
                    a(f"v_mov_b32 v160, 0")
                    for i in range(0, 72, 2): a(f"v_max3_f32 v160, |v{VACC+i}|, |v{VACC+i+1}|, v160")
                HS = KH if isk else QH; TS = KT if isk else QT; sr = 40 if isk else 36
                a("s_and_b32 s46, s23, 3"); a(f"s_mul_i32 s46, s46, {8*HS}"); a(f"s_mul_i32 s47, s27, {TS}"); a("s_add_u32 s46, s46, s47")
                a("v_and_b32 v146, 15, v230"); a("v_bfe_u32 v147, v230, 4, 2"); a("v_lshlrev_b32 v147, 2, v147")
                a(f"s_mov_b32 s47, {HS}")
                for j in range(9):
                    for p in range(2):
                        a(f"v_add_u32 v148, {16*j+2*p}, v147")
                        a("v_mul_u32_u24 v149, 57, v148"); a("v_lshrrev_b32 v149, 10, v149")
                        a("v_mul_u32_u24 v150, 18, v149"); a("v_sub_u32 v148, v148, v150")
                        a("v_mul_lo_u32 v149, v149, s47")
                        a("v_lshrrev_b32 v150, 3, v148"); a("v_lshlrev_b32 v150, 9, v150"); a("v_and_b32 v151, 7, v148"); a("v_lshl_add_u32 v150, v151, 1, v150")
                        a("v_cmp_gt_u32 vcc, 16, v148")
                        a("v_mov_b32 v151, 4"); a("v_mov_b32 v152, 16"); a("v_cndmask_b32 v151, v151, v152, vcc")
                        a("v_mad_u32_u24 v149, v146, v151, v149"); a("v_add_u32 v149, v149, v150")
                        a("v_lshl_add_u32 v150, v151, 4, v149")
                        for mt in range(2):
                            acc = VACC + (mt*9+j)*4 + 2*p
                            a(f"v_cvt_pk_bf16_f32 v{153+mt}, v{acc}, v{acc+1}")
                            a.vmem(f"buffer_store_dword v{153+mt}, v{149+mt}, s[{sr}:{sr+3}], s46 offen", 'st')
                if isk:
                    wave_max(a, 160, 161)
                    a("s_lshl_b32 s46, s23, 8"); a("s_lshl_b32 s47, s27, 2"); a("s_add_u32 s46, s46, s47"); a("s_sub_u32 s46, s46, 1024")
                    a("v_mov_b32 v146, 0"); a.vmem("buffer_store_dword v160, v146, s[48:51], s46 offen", 'st')
            a("s_endpgm")
        else:
            a(f"v_mov_b32 v160, 0")
            for i in range(0, 72, 2): a(f"v_max3_f32 v160, |v{VACC+i}|, |v{VACC+i+1}|, v160")
            a("s_and_b32 s46, s23, 3"); a(f"s_mul_i32 s46, s46, {8*KH}"); a(f"s_mul_i32 s47, s27, {KT}"); a("s_add_u32 s46, s46, s47"); a("s_add_u32 s46, s46, 1152")
            a("v_and_b32 v146, 15, v230"); a("v_bfe_u32 v147, v230, 4, 1"); a("v_bfe_u32 v148, v230, 5, 1")
            a("v_mul_u32_u24 v147, 304, v147"); a("v_lshl_add_u32 v147, v148, 3, v147")
            a(f"s_mov_b32 s47, {KH}")
            for j in range(9):
                a(f"v_add_u32 v148, {16*j}, v146"); a("v_mul_u32_u24 v149, 57, v148"); a("v_lshrrev_b32 v149, 10, v149")
                a("v_mul_u32_u24 v150, 18, v149"); a("v_sub_u32 v148, v148, v150"); a("v_mul_lo_u32 v149, v149, s47")
                a("v_lshl_add_u32 v149, v148, 4, v149"); a("v_add_u32 v149, v149, v147")
                for mt in range(2):
                    acc = VACC + (mt*9+j)*4; d = 152 + 2*mt
                    a(f"v_cvt_pk_bf16_f32 v{d}, v{acc}, v{acc+1}"); a(f"v_cvt_pk_bf16_f32 v{d+1}, v{acc+2}, v{acc+3}")
                    a.vmem(f"buffer_store_dwordx2 v[{d}:{d+1}], v149, s[40:43], s46 offen offset:{608*mt}", 'st')
                a("s_nop 0")
            a("v_and_b32 v146, 63, v230"); a("v_bfe_u32 v147, v146, 2, 3"); a("v_mul_lo_u32 v147, v147, s47"); a("v_and_b32 v148, 3, v146")
            a("v_mul_u32_u24 v148, 304, v148"); a("v_add_u32 v147, v147, v148"); a("v_add_u32 v147, 288, v147")
            for i in range(4): a(f"v_mov_b32 v{152+i}, 0x3f803f80")
            a.vmem("buffer_store_dwordx4 v[152:155], v147, s[40:43], s46 offen", 'st')
            wave_max(a, 160, 161)
            a("s_lshl_b32 s46, s23, 8"); a("s_lshl_b32 s47, s27, 2"); a("s_add_u32 s46, s46, s47"); a("s_sub_u32 s46, s46, 1024")
            a("v_mov_b32 v146, 0"); a.vmem("buffer_store_dword v160, v146, s[48:51], s46 offen", 'st')
            a("s_endpgm")
    a.lab("{P}GATE"); a.vm = []
    a("s_sub_u32 s18, s2, 448"); a("s_lshl_b32 s18, s18, 5")
    a("s_waitcnt lgkmcnt(0)")
    srd(a, 28, 4, 0, 2048*576*2); srd(a, 32, 14, 0, 1152); srd(a, 36, 16, WS_G, 8192)
    a("v_lshrrev_b32 v146, 3, v230"); a("v_add_u32 v146, s18, v146")
    a("v_and_b32 v147, 7, v230"); a("v_lshlrev_b32 v147, 4, v147")
    a("v_mul_u32_u24 v148, 1152, v146"); a("v_add_u32 v148, v148, v147")
    for i in range(9):
        a.vmem(f"buffer_load_dwordx4 v[{4*i}:{4*i+3}], v148, s[28:31], 0 offen offset:{128*i}", 'x')
        a.vmem(f"buffer_load_dwordx4 v[{36+4*i}:{36+4*i+3}], v147, s[32:35], 0 offen offset:{128*i}", 'x')
    def gt(sr, size, sh, vd):
        a(f"v_lshlrev_b32 v82, {sh}, v230"); a(f"s_lshl_b32 s19, s18, {3+sh}"); a("v_add_u32 v82, s19, v82")
        n = (size + (16384 << sh) - 1) // (16384 << sh)
        for i in range(n):
            if i: a(f"v_add_u32 v82, {16384 << sh}, v82")
            a.vmem(f"buffer_load_dword v{vd+i}, v82, s[{sr}:{sr+3}], 0 offen", 'gt')
    if "gtouch" in opt: a("s_load_dwordx2 s[60:61], s[0:1], 48"); a("s_load_dwordx2 s[62:63], s[0:1], 16")
    if "gtouch2" in opt:
        sh = 6 if "gt64" in opt else 7
        srd(a, 48, 10, 0, 576*4608*2); srd(a, 52, 6, 0, 576*1728*2)
        gt(48, 576*4608*2, sh, 100); gt(52, 576*1728*2, sh, 108)
    a.wait_vm({'x'})
    a("v_mov_b32 v80, 0"); a("v_mov_b32 v81, 0")
    for i in range(36):
        a(f"v_lshlrev_b32 v72, 16, v{i}"); a(f"v_lshlrev_b32 v73, 16, v{36+i}"); a("v_fmac_f32 v80, v72, v73")
        a(f"v_and_b32 v74, 0xffff0000, v{i}"); a(f"v_and_b32 v75, 0xffff0000, v{36+i}"); a("v_fmac_f32 v81, v74, v75")
    a("v_add_f32 v80, v80, v81")
    for c in ("quad_perm:[1,0,3,2]", "quad_perm:[2,3,0,1]", "row_half_mirror"):
        a("s_nop 1"); a(f"v_add_f32_dpp v80, v80, v80 {c} row_mask:0xf bank_mask:0xf")
    a("v_mul_f32 v80, 0xbfb8aa3b, v80"); a("v_exp_f32 v80, v80"); a("s_nop 0"); a("v_add_f32 v80, 1.0, v80"); a("v_rcp_f32 v80, v80")
    a("v_lshlrev_b32 v146, 2, v146"); a("s_nop 0")
    a.vmem("buffer_store_dword v80, v146, s[36:39], 0 offen", 'st')
    if "gtouch" in opt:
        sh = 6 if "gt64" in opt else 7
        a("s_waitcnt lgkmcnt(0)")
        srd(a, 40, 60, 0, 4608*576*2); srd(a, 44, 62, 0, 576*576*2)
        gt(40, 4608*576*2, sh, 84); gt(44, 576*576*2, sh, 92)
        a("s_waitcnt vmcnt(0)")
    a.lab("{P}END"); a("s_endpgm")
    return name, a.text().replace("{P}", name + "_"), kdesc(name, 232), (grid, 256, 79872)
```

```python
from gen_core import *
VACC=0; VB=144; VAF=180; VADDR=212; VT=221; TID=230
def wave_max(a, v, t):
    for c in ("row_ror:8","row_ror:4","row_ror:2","row_ror:1"):
        a("s_nop 1"); a(f"v_max_f32_dpp v{v}, v{v}, v{v} {c} row_mask:0xf bank_mask:0xf")
    a(f"v_mov_b32 v{t}, v{v}"); a("s_nop 1"); a(f"v_permlane16_swap_b32 v{t}, v{v}"); a("s_nop 1"); a(f"v_max_f32 v{v}, v{v}, v{t}")
    a(f"v_mov_b32 v{t}, v{v}"); a("s_nop 1"); a(f"v_permlane32_swap_b32 v{t}, v{v}"); a("s_nop 1"); a(f"v_max_f32 v{v}, v{v}, v{t}")

def h_epilogue(a, pol=" sc1"):
    t = VT
    for i in range(144): a(f"v_max_f32 v{i}, 0, v{i}")
    for i in range(0, 144, 2): a(f"v_pk_mul_f32 v[{i}:{i+1}], v[{i}:{i+1}], v[{i}:{i+1}]")
    a(f"v_and_b32 v{t}, 15, v{TID}"); a(f"v_bfe_u32 v{t+1}, v{TID}, 3, 1"); a(f"v_mul_u32_u24 v{t+1}, 3, v{t+1}")
    a(f"v_bfe_u32 v{t+2}, v{TID}, 4, 1"); a(f"v_bfe_u32 v{t+3}, v{TID}, 5, 1")
    a(f"s_lshr_b32 s45, s21, 1"); a("s_lshl_b32 s45, s45, 12")
    a(f"v_lshlrev_b32 v{t}, 6, v{t}"); a(f"v_add_u32 v{t}, s45, v{t}")
    a(f"v_lshl_add_u32 v{t+4}, v{t+2}, 1, v{t+3}"); a(f"v_xor_b32 v{t+4}, v{t+4}, v{t+1}"); a(f"v_lshl_add_u32 v{t+4}, v{t+4}, 4, v{t}")
    a("s_and_b32 s46, s21, 1"); a("s_lshl_b32 s47, s46, 1")
    a(f"v_add_u32 v{t+5}, s47, v{t+3}"); a(f"v_xor_b32 v{t+5}, v{t+5}, v{t+1}"); a(f"v_lshl_add_u32 v{t+5}, v{t+5}, 4, v{t}"); a(f"v_lshl_add_u32 v{t+5}, v{t+2}, 3, v{t+5}")
    a("s_mul_i32 s45, s24, 144"); a("s_mul_i32 s47, s23, 9"); a("s_add_u32 s45, s45, s47"); a("s_lshl_b32 s45, s45, 13")
    a("s_cmp_eq_u32 s46, 1"); a("s_cbranch_scc1 {P}HE1")
    for wn in range(2):
        if wn: a.lab("{P}HE1")
        n = 0
        for jp in range(5):
            if jp < 4: j = 2*jp + wn; kk = jp + 5*wn
            else: j = 0 if wn else 8; kk = 4
            a(f"s_add_u32 s47, s45, {kk*8192}")
            for mt in range(4):
                acc = VACC + (mt*9+j)*4; d = VB + 4*(n % 16); n += 1
                a(f"v_cvt_pk_bf16_f32 v{d}, v{acc}, v{acc+1}"); a(f"v_cvt_pk_bf16_f32 v{d+1}, v{acc+2}, v{acc+3}")
                if jp < 4:
                    a(f"v_cvt_pk_bf16_f32 v{d+2}, v{acc+4}, v{acc+5}"); a(f"v_cvt_pk_bf16_f32 v{d+3}, v{acc+6}, v{acc+7}")
                    a("s_nop 1"); a(f"v_permlane16_swap_b32 v{d}, v{d+2}"); a(f"v_permlane16_swap_b32 v{d+1}, v{d+3}")
                    a.vmem(f"buffer_store_dwordx4 v[{d}:{d+3}], v{t+4}, s[40:43], s47 offen offset:{1024*mt}{pol}", 'st')
                else:
                    a.vmem(f"buffer_store_dwordx2 v[{d}:{d+1}], v{t+5}, s[40:43], s47 offen offset:{1024*mt}{pol}", 'st')
        stamp(a, 3); stamp_out(a, 4, [0, 100, 255] if wn == 0 else [], VT)
        a("s_endpgm")

def h_like_ids(a):
    a("s_and_b32 s18, s2, 7"); a("s_lshr_b32 s19, s2, 3")
    a("s_and_b32 s23, s18, 3"); a("s_lshl_b32 s23, s23, 2"); a("s_and_b32 s24, s19, 3"); a("s_add_u32 s23, s23, s24")
    a("s_lshr_b32 s24, s18, 2"); a("s_lshl_b32 s24, s24, 3"); a("s_lshr_b32 s25, s19, 2"); a("s_add_u32 s24, s24, s25")

def k1(name="k1_kernel", opt=(), grid=512):
    a = Asm(); a.opt = opt
    a(f"s_cmp_ge_u32 s2, 512"); a("s_cbranch_scc1 {P}END"); a(f"v_mov_b32 v{TID}, v0")
    stamp(a, 0)
    a("s_load_dwordx4 s[4:7], s[0:1], 0")
    a("s_load_dwordx4 s[8:11], s[0:1], 24")
    a("s_load_dwordx2 s[12:13], s[0:1], 40")
    a("s_load_dwordx2 s[14:15], s[0:1], 64")
    a("s_load_dwordx2 s[16:17], s[0:1], 88")
    a(f"v_lshrrev_b32 v{VT}, 6, v{TID}"); a("s_nop 0"); a(f"v_readfirstlane_b32 s21, v{VT}")
    a("s_cmp_ge_u32 s2, 448"); a("s_cbranch_scc1 {P}GATE")
    a("s_cmp_ge_u32 s2, 256"); a("s_cbranch_scc1 {P}QKV")
    if "prio_h" in opt: a("s_setprio 3")
    h_like_ids(a)
    a("s_mul_i32 s44, s24, 128*1152")
    a("s_mul_i32 s26, s23, 576")
    g = Gemm(a, 18, 1152, 4608, 3, 2 if 'pd2' in opt else 3, 2, 2, 4, True, VACC, VB, VAF, VADDR, 28, 32, 26, 44, 52)
    g.setup(21, VT, TID)
    a("s_waitcnt lgkmcnt(0)")
    srd(a, 28, 4, 0, 2048*576*2); srd(a, 32, 10, 0, 576*4608*2); srd(a, 36, 12, 0, 4608*2); srd(a, 40, 16, WS_H, 2048*4608*2)
    a("s_and_b32 s27, s21, 1"); a("s_mul_i32 s27, s27, 288"); a("s_add_u32 s27, s27, s26")
    a("s_lshr_b32 s22, s21, 1"); a("s_lshl_b32 s22, s22, 6"); a("s_lshl_b32 s25, s24, 7"); a("s_add_u32 s22, s22, s25")
    a(f"v_bfe_u32 v{VT}, v{TID}, 4, 2"); a(f"v_lshlrev_b32 v{VT}, 3, v{VT}"); a(f"v_add_u32 v{VT}, s27, v{VT}")
    for j in range(9): a.vmem(f"buffer_load_dwordx2 v[{VB+2*j}:{VB+2*j+1}], v{VT}, s[36:39], 0 offen offset:{32*j}", 'bias')
    a("s_mov_b32 s56, s44")
    g.prologue_issue()
    if "atouch" in opt:
        a(f"v_lshlrev_b32 v228, 7, v{TID}"); a("s_lshl_b32 s57, s2, 15"); a("v_add_u32 v228, s57, v228")
        a.vmem("buffer_load_dword v229, v228, s[32:35], 0 offen", 'touch')
    if "notouch" not in opt:
        a("s_and_b32 s57, s23, 3"); a("s_mul_i32 s57, s57, 36864"); a("s_add_u32 s56, s56, s57"); touch_lin(a, 28, TID, VT, 56, 3, 59, 229)
        a("s_and_b32 s57, s24, 7"); a(f"s_mul_i32 s57, s57, {72*9216}"); a("s_mul_i32 s58, s23, 576"); a("s_add_u32 s57, s57, s58"); touch_rows(a, 32, TID, VT, 57, 72, 9, 9216, 229)
    a.wait_vm({'bias'})
    for j in range(9):
        for mt in range(4):
            acc = VACC + (mt*9+j)*4
            a(f"v_lshlrev_b32 v{acc}, 16, v{VB+2*j}"); a(f"v_and_b32 v{acc+1}, 0xffff0000, v{VB+2*j}")
            a(f"v_lshlrev_b32 v{acc+2}, 16, v{VB+2*j+1}"); a(f"v_and_b32 v{acc+3}, 0xffff0000, v{VB+2*j+1}")
    g.run()
    if "noepi" in opt: a("s_endpgm")
    h_epilogue(a, "".join(" " + o[4:].replace("_", " ") for o in opt if o.startswith("pol_")))
    a.lab("{P}QKV"); a.vm = []
    if "prio_q" in opt: a("s_setprio 3")
    a("s_sub_u32 s18, s2, 256")
    a("s_and_b32 s19, s18, 7"); a("s_lshr_b32 s25, s18, 3")
    a("s_lshr_b32 s24, s19, 2"); a("s_lshl_b32 s24, s24, 3"); a("s_and_b32 s23, s25, 7"); a("s_add_u32 s24, s24, s23")
    a("s_and_b32 s23, s19, 3"); a("s_mul_i32 s23, s23, 3"); a("s_lshr_b32 s25, s25, 3"); a("s_add_u32 s23, s23, s25")
    a("s_lshl_b32 s20, s24, 7"); a("s_mul_i32 s44, s24, 128*1152")
    a("s_lshl_b32 s22, s21, 5"); a("s_add_u32 s22, s22, s20")
    a("s_mul_i32 s26, s23, 288")
    Gemm(a, 18, 1152, 1728, 4, 3 if 'pd2' in opt else 4, 4, 1, 2, True, VACC, VB, VAF, VADDR, 28, 32, 26, 44, 52).setup(21, VT, TID)
    a("s_waitcnt lgkmcnt(0)")
    srd(a, 28, 4, 0, 2048*576*2); srd(a, 32, 6, 0, 576*1728*2)
    srd(a, 36, 16, WS_QF, 32*QH); srd(a, 40, 16, WS_KV, 32*KH); srd(a, 48, 16, WS_MX, 4096)
    for trans, lab in ((True, "{P}QK"), (False, "{P}V")):
        if trans:
            a("s_cmp_ge_u32 s23, 8"); a("s_cbranch_scc1 {P}V")
        else:
            a.lab("{P}V"); a.vm = []
        g = Gemm(a, 18, 1152, 1728, 4, 3 if 'pd2' in opt else 4, 4, 1, 2, trans, VACC, VB, VAF, VADDR, 28, 32, 26, 44, 52)
        g.prologue_issue()
        if "atouch" in opt:
            a(f"v_lshlrev_b32 v228, 7, v{TID}"); a("s_sub_u32 s57, s2, 256"); a("s_lshl_b32 s57, s57, 15"); a("v_add_u32 v228, s57, v228")
            a.vmem("buffer_load_dword v229, v228, s[32:35], 0 offen", 'touch')
            a(f"v_subrev_u32 v228, {15552*128}, v228")
            a.vmem("buffer_load_dword v229, v228, s[28:31], 0 offen", 'touch')
        if "notouch" not in opt:
            a("s_and_b32 s57, s24, 7"); a(f"s_mul_i32 s57, s57, {72*3456}"); a("s_mul_i32 s58, s23, 288"); a("s_add_u32 s57, s57, s58"); touch_rows(a, 32, TID, VT, 57, 72, 5, 3456, 229)
        for i in range(72): a(f"v_mov_b32 v{VACC+i}, 0")
        g.run()
        a("s_lshr_b32 s27, s22, 5")
        if trans:
            a("s_cmp_ge_u32 s23, 4"); a("s_cbranch_scc1 {P}KEPI")
            a("s_mov_b32 s45, 0x3eae1a93")
            for i in range(72): a(f"v_mul_f32 v{VACC+i}, s45, v{VACC+i}")
            for isk in (0, 1):
                if isk:
                    a("s_endpgm"); a.lab("{P}KEPI")
                    a(f"v_mov_b32 v160, 0")
                    for i in range(0, 72, 2): a(f"v_max3_f32 v160, |v{VACC+i}|, |v{VACC+i+1}|, v160")
                HS = KH if isk else QH; TS = KT if isk else QT; sr = 40 if isk else 36
                a("s_and_b32 s46, s23, 3"); a(f"s_mul_i32 s46, s46, {8*HS}"); a(f"s_mul_i32 s47, s27, {TS}"); a("s_add_u32 s46, s46, s47")
                a("v_and_b32 v146, 15, v230"); a("v_bfe_u32 v147, v230, 4, 2"); a("v_lshlrev_b32 v147, 2, v147")
                a(f"s_mov_b32 s47, {HS}")
                for j in range(9):
                    for p in range(2):
                        a(f"v_add_u32 v148, {16*j+2*p}, v147")
                        a("v_mul_u32_u24 v149, 57, v148"); a("v_lshrrev_b32 v149, 10, v149")
                        a("v_mul_u32_u24 v150, 18, v149"); a("v_sub_u32 v148, v148, v150")
                        a("v_mul_lo_u32 v149, v149, s47")
                        a("v_lshrrev_b32 v150, 3, v148"); a("v_lshlrev_b32 v150, 9, v150"); a("v_and_b32 v151, 7, v148"); a("v_lshl_add_u32 v150, v151, 1, v150")
                        a("v_cmp_gt_u32 vcc, 16, v148")
                        a("v_mov_b32 v151, 4"); a("v_mov_b32 v152, 16"); a("v_cndmask_b32 v151, v151, v152, vcc")
                        a("v_mad_u32_u24 v149, v146, v151, v149"); a("v_add_u32 v149, v149, v150")
                        a("v_lshl_add_u32 v150, v151, 4, v149")
                        for mt in range(2):
                            acc = VACC + (mt*9+j)*4 + 2*p
                            a(f"v_cvt_pk_bf16_f32 v{153+mt}, v{acc}, v{acc+1}")
                            a.vmem(f"buffer_store_dword v{153+mt}, v{149+mt}, s[{sr}:{sr+3}], s46 offen", 'st')
                if isk:
                    wave_max(a, 160, 161)
                    a("s_lshl_b32 s46, s23, 8"); a("s_lshl_b32 s47, s27, 2"); a("s_add_u32 s46, s46, s47"); a("s_sub_u32 s46, s46, 1024")
                    a("v_mov_b32 v146, 0"); a.vmem("buffer_store_dword v160, v146, s[48:51], s46 offen", 'st')
            a("s_endpgm")
        else:
            a(f"v_mov_b32 v160, 0")
            for i in range(0, 72, 2): a(f"v_max3_f32 v160, |v{VACC+i}|, |v{VACC+i+1}|, v160")
            a("s_and_b32 s46, s23, 3"); a(f"s_mul_i32 s46, s46, {8*KH}"); a(f"s_mul_i32 s47, s27, {KT}"); a("s_add_u32 s46, s46, s47"); a("s_add_u32 s46, s46, 1152")
            a("v_and_b32 v146, 15, v230"); a("v_bfe_u32 v147, v230, 4, 1"); a("v_bfe_u32 v148, v230, 5, 1")
            a("v_mul_u32_u24 v147, 304, v147"); a("v_lshl_add_u32 v147, v148, 3, v147")
            a(f"s_mov_b32 s47, {KH}")
            for j in range(9):
                a(f"v_add_u32 v148, {16*j}, v146"); a("v_mul_u32_u24 v149, 57, v148"); a("v_lshrrev_b32 v149, 10, v149")
                a("v_mul_u32_u24 v150, 18, v149"); a("v_sub_u32 v148, v148, v150"); a("v_mul_lo_u32 v149, v149, s47")
                a("v_lshl_add_u32 v149, v148, 4, v149"); a("v_add_u32 v149, v149, v147")
                for mt in range(2):
                    acc = VACC + (mt*9+j)*4; d = 152 + 2*mt
                    a(f"v_cvt_pk_bf16_f32 v{d}, v{acc}, v{acc+1}"); a(f"v_cvt_pk_bf16_f32 v{d+1}, v{acc+2}, v{acc+3}")
                    a.vmem(f"buffer_store_dwordx2 v[{d}:{d+1}], v149, s[40:43], s46 offen offset:{608*mt}", 'st')
                a("s_nop 0")
            a("v_and_b32 v146, 63, v230"); a("v_bfe_u32 v147, v146, 2, 3"); a("v_mul_lo_u32 v147, v147, s47"); a("v_and_b32 v148, 3, v146")
            a("v_mul_u32_u24 v148, 304, v148"); a("v_add_u32 v147, v147, v148"); a("v_add_u32 v147, 288, v147")
            for i in range(4): a(f"v_mov_b32 v{152+i}, 0x3f803f80")
            a.vmem("buffer_store_dwordx4 v[152:155], v147, s[40:43], s46 offen", 'st')
            wave_max(a, 160, 161)
            a("s_lshl_b32 s46, s23, 8"); a("s_lshl_b32 s47, s27, 2"); a("s_add_u32 s46, s46, s47"); a("s_sub_u32 s46, s46, 1024")
            a("v_mov_b32 v146, 0"); a.vmem("buffer_store_dword v160, v146, s[48:51], s46 offen", 'st')
            a("s_endpgm")
    a.lab("{P}GATE"); a.vm = []
    a("s_sub_u32 s18, s2, 448"); a("s_lshl_b32 s18, s18, 5")
    a("s_waitcnt lgkmcnt(0)")
    srd(a, 28, 4, 0, 2048*576*2); srd(a, 32, 14, 0, 1152); srd(a, 36, 16, WS_G, 8192)
    a("v_lshrrev_b32 v146, 3, v230"); a("v_add_u32 v146, s18, v146")
    a("v_and_b32 v147, 7, v230"); a("v_lshlrev_b32 v147, 4, v147")
    a("v_mul_u32_u24 v148, 1152, v146"); a("v_add_u32 v148, v148, v147")
    for i in range(9):
        a.vmem(f"buffer_load_dwordx4 v[{4*i}:{4*i+3}], v148, s[28:31], 0 offen offset:{128*i}", 'x')
        a.vmem(f"buffer_load_dwordx4 v[{36+4*i}:{36+4*i+3}], v147, s[32:35], 0 offen offset:{128*i}", 'x')
    def gt(sr, size, sh, vd):
        a(f"v_lshlrev_b32 v82, {sh}, v230"); a(f"s_lshl_b32 s19, s18, {3+sh}"); a("v_add_u32 v82, s19, v82")
        n = (size + (16384 << sh) - 1) // (16384 << sh)
        for i in range(n):
            if i: a(f"v_add_u32 v82, {16384 << sh}, v82")
            a.vmem(f"buffer_load_dword v{vd+i}, v82, s[{sr}:{sr+3}], 0 offen", 'gt')
    if "gtouch" in opt: a("s_load_dwordx2 s[60:61], s[0:1], 48"); a("s_load_dwordx2 s[62:63], s[0:1], 16")
    if "gtouch2" in opt:
        sh = 6 if "gt64" in opt else 7
        srd(a, 48, 10, 0, 576*4608*2); srd(a, 52, 6, 0, 576*1728*2)
        gt(48, 576*4608*2, sh, 100); gt(52, 576*1728*2, sh, 108)
    a.wait_vm({'x'})
    a("v_mov_b32 v80, 0"); a("v_mov_b32 v81, 0")
    for i in range(36):
        a(f"v_lshlrev_b32 v72, 16, v{i}"); a(f"v_lshlrev_b32 v73, 16, v{36+i}"); a("v_fmac_f32 v80, v72, v73")
        a(f"v_and_b32 v74, 0xffff0000, v{i}"); a(f"v_and_b32 v75, 0xffff0000, v{36+i}"); a("v_fmac_f32 v81, v74, v75")
    a("v_add_f32 v80, v80, v81")
    for c in ("quad_perm:[1,0,3,2]", "quad_perm:[2,3,0,1]", "row_half_mirror"):
        a("s_nop 1"); a(f"v_add_f32_dpp v80, v80, v80 {c} row_mask:0xf bank_mask:0xf")
    a("v_mul_f32 v80, 0xbfb8aa3b, v80"); a("v_exp_f32 v80, v80"); a("s_nop 0"); a("v_add_f32 v80, 1.0, v80"); a("v_rcp_f32 v80, v80")
    a("v_lshlrev_b32 v146, 2, v146"); a("s_nop 0")
    a.vmem("buffer_store_dword v80, v146, s[36:39], 0 offen", 'st')
    if "gtouch" in opt:
        sh = 6 if "gt64" in opt else 7
        a("s_waitcnt lgkmcnt(0)")
        srd(a, 40, 60, 0, 4608*576*2); srd(a, 44, 62, 0, 576*576*2)
        gt(40, 4608*576*2, sh, 84); gt(44, 576*576*2, sh, 92)
        a("s_waitcnt vmcnt(0)")
    a.lab("{P}END"); a("s_endpgm")
    return name, a.text().replace("{P}", name + "_"), kdesc(name, 232), (grid, 256, 79872)
```

```python
from gen_core import *
from gen_k1 import VACC, VB, VAF, VADDR, VT, TID, h_like_ids, wave_max
CH = 10240; NB = 5; NSPL = 4
def gemm2(a, pol):
    VB = 0; VAF = 36; VADDR = 52; VT = 61; TID = 70; TMP = 72
    a(f"v_mov_b32 v{TID}, v0")
    a("s_and_b32 s17, s2, 7") if False else None
    a("s_and_b32 s25, s2, 7"); a("s_lshr_b32 s19, s2, 3"); a("s_lshr_b32 s18, s25, 1")
    a("s_and_b32 s23, s19, 3"); a("s_lshr_b32 s24, s19, 2"); a("s_and_b32 s25, s25, 1"); a("s_lshl_b32 s25, s25, 3"); a("s_add_u32 s24, s24, s25")
    a("s_mul_i32 s44, s24, 144"); a("s_mul_i32 s25, s18, 36"); a("s_add_u32 s44, s44, s25"); a("s_lshl_b32 s44, s44, 13")
    a(f"s_mul_i32 s26, s18, {1152*1152}"); a("s_mul_i32 s25, s23, 288"); a("s_add_u32 s26, s26, s25")
    g = Gemm(a, 36, 0, 576, 3, 3, 4, 1, 2, True, 0, VB, VAF, VADDR, 28, 32, 26, 44, 52, atiled=True, acca=True)
    g.setup(21, VT, TID)
    a("s_waitcnt lgkmcnt(0)")
    srd(a, 28, 16, WS_H, 2048*4608*2); srd(a, 32, 8, 0, 4608*576*2); srd(a, 40, 16, WS_P, NSPL*PSZ)
    a("s_mov_b32 s56, s44")
    g.prologue_issue()
    if "touch" in a.opt:
        a(f"s_mul_i32 s58, s23, {9*8192}"); a("s_add_u32 s56, s56, s58"); touch_lin(a, 28, TID, VT, 56, 5, 59, TMP)
        a(f"s_mul_i32 s57, s18, {1152*1152}"); a("s_and_b32 s58, s2, 1"); a("s_lshl_b32 s58, s58, 5"); a("s_add_u32 s58, s58, s19"); a("s_mul_i32 s58, s58, 20736"); a("s_add_u32 s57, s57, s58"); touch_lin(a, 32, TID, VT, 57, 2, 59, TMP)
    for i in range(72): a(f"v_accvgpr_write_b32 a{i}, 0")
    g.run()
    a("s_lshl_b32 s45, s21, 1"); a("s_lshl_b32 s46, s24, 3"); a("s_add_u32 s45, s45, s46"); a("s_mul_i32 s45, s45, 36")
    a("s_mul_i32 s46, s23, 9"); a("s_add_u32 s45, s45, s46")
    a("s_lshl_b32 s45, s45, 9"); a(f"s_mul_i32 s46, s18, {PSZ}"); a("s_add_u32 s45, s45, s46")
    a(f"v_and_b32 v{VT}, 63, v{TID}"); a(f"v_lshlrev_b32 v{VT}, 3, v{VT}")
    n = 0
    for mt in range(2):
        for j in range(9):
            acc = (mt*9+j)*4; d = VB + 2*n; x = TMP + 4*(n % 4); n += 1
            for r in range(4): a(f"v_accvgpr_read_b32 v{x+r}, a{acc+r}")
            a(f"v_cvt_pk_bf16_f32 v{d}, v{x}, v{x+1}"); a(f"v_cvt_pk_bf16_f32 v{d+1}, v{x+2}, v{x+3}")
            if j == 8: a(f"s_add_u32 s46, s45, 4096")
            a.vmem(f"buffer_store_dwordx2 v[{d}:{d+1}], v{VT}, s[40:43], s{46 if j == 8 else 45} offen offset:{512*j if j < 8 else 0}{pol}", 'st')
        a(f"s_add_u32 s45, s45, {36*512}")
    stamp(a, 3); stamp_out(a, 4, [0, 128, 248], VT)
    a("s_endpgm")

S = [0, 16]; O = [0]; P = [32]; KL = [40, 46]; KH2 = [44, 50]; V = [52, 60]; QL = [68]; QH2 = [72]; AK = 74; AK2 = 75; AV = 76; T = 78; NQ = 1
def attn(a, pol):
    a("s_sub_u32 s18, s2, 256"); a("s_and_b32 s19, s18, 7"); a("s_lshr_b32 s18, s18, 3")
    a("s_lshl_b32 s19, s19, 2"); a("s_lshr_b32 s20, s18, 4"); a("s_add_u32 s19, s19, s20")
    a("s_and_b32 s18, s18, 15"); a("s_lshl_b32 s18, s18, 2"); a("s_add_u32 s18, s18, s21")
    a("s_waitcnt lgkmcnt(0)")
    srd(a, 28, 16, WS_QF, 32*QH); srd(a, 32, 16, WS_KV, 32*KH); srd(a, 36, 16, WS_MX, 4096); srd(a, 40, 16, WS_O, 2048*576*2)
    a(f"v_and_b32 v{T}, 63, v0"); a(f"v_lshlrev_b32 v{AK}, 4, v{T}")
    a(f"s_mul_i32 s22, s19, {KH}")
    a(f"s_mul_i32 s23, s21, {KT}"); a(f"v_add_u32 v{T+1}, s23, v{AK}")
    def dma(c):
        a(f"s_add_u32 m0, s23, {(c % NB)*CH}"); a(f"s_add_u32 s24, s22, {c*CH}")
        a.vmem(f"buffer_load_dwordx4 v{T+1}, s[32:35], s24 offen lds", ('C', c))
        a.vmem(f"buffer_load_dwordx4 v{T+1}, s[32:35], s24 offen offset:1024 lds", ('C', c))
        a("s_mov_b32 exec_hi, 0"); a.vmem(f"buffer_load_dwordx4 v{T+1}, s[32:35], s24 offen offset:2048 lds", ('C', c)); a("s_mov_b64 exec, -1")
    dma(0)
    a(f"s_mul_i32 s24, s19, {QH}"); a(f"s_mul_i32 s25, s18, {QT}"); a("s_add_u32 s24, s24, s25")
    a(f"v_and_b32 v{T+2}, 31, v{T}"); a(f"v_lshlrev_b32 v{AK2}, 2, v{T+2}"); a(f"v_add_u32 v{AK2}, 1024, v{AK2}")
    a(f"v_mov_b32 v{QH2[0]}, 0"); a(f"v_mov_b32 v{QH2[0]+1}, 0")
    for q in range(2): a(f"v_mov_b32 v{KH2[q]+1}, 0x3f803f80")
    for q in range(NQ):
        a.vmem(f"buffer_load_dwordx4 v[{QL[q]}:{QL[q]+3}], v{AK}, s[28:31], s24 offen offset:{QT*q}", 'q')
        a("s_mov_b32 exec_hi, 0"); a.vmem(f"buffer_load_dword v{QH2[q]}, v{AK2}, s[28:31], s24 offen offset:{QT*q}", 'q'); a("s_mov_b64 exec, -1")
    a("s_lshr_b32 s25, s19, 3"); a("s_lshl_b32 s25, s25, 8"); a(f"v_lshlrev_b32 v{T+3}, 2, v{T}")
    a.vmem(f"buffer_load_dword v{T+4}, v{T+3}, s[36:39], s25 offen", 'q')
    a.vmem(f"buffer_load_dword v{T+5}, v{T+3}, s[36:39], s25 offen offset:1024", 'q')
    dma(1); dma(2); dma(3)
    a(f"v_lshrrev_b32 v{T+3}, 5, v{T}"); a(f"v_mul_u32_u24 v{T+3}, 19, v{T+3}"); a(f"v_add_u32 v{T+3}, v{T+3}, v{T+2}"); a(f"v_lshlrev_b32 v{AV}, 4, v{T+3}"); a(f"v_add_u32 v{AV}, 1152, v{AV}")
    for i in range(16): a(f"v_accvgpr_write_b32 a{i}, 0")
    a.wait_vm({'q'})
    a(f"v_max_f32 v{T+4}, v{T+4}, v{T+5}"); wave_max(a, T+4, T+5)
    a(f"v_mov_b32 v{T+6}, 0"); a(f"v_mov_b32 v{T+9}, 0")
    for q in range(NQ):
        d = T+6 if q == 0 else T+9
        for r in [QL[q], QL[q]+1, QL[q]+2, QL[q]+3, QH2[q]]:
            a(f"v_lshlrev_b32 v{T+7}, 16, v{r}"); a(f"v_and_b32 v{T+8}, 0xffff0000, v{r}"); a(f"v_fmac_f32 v{d}, v{T+7}, v{T+7}"); a(f"v_fmac_f32 v{d}, v{T+8}, v{T+8}")
        a(f"v_mov_b32 v{T+7}, v{d}"); a("s_nop 1"); a(f"v_permlane32_swap_b32 v{T+7}, v{d}"); a("s_nop 1"); a(f"v_add_f32 v{d}, v{d}, v{T+7}")
    a(f"v_max_f32 v{T+6}, v{T+6}, v{T+9}")
    wave_max(a, T+6, T+7)
    a(f"v_mul_f32 v{T+7}, v{T+4}, v{T+4}"); a(f"v_mul_f32 v{T+7}, v{T+7}, v{T+6}"); a(f"v_mul_f32 v{T+7}, 0x41900000, v{T+7}")
    a(f"v_mov_b32 v{T+8}, 0x45c80000"); a(f"v_cmp_le_f32 vcc, v{T+7}, v{T+8}"); a("s_mov_b64 s[46:47], vcc")
    a(f"v_mov_b32 v{T+8}, 0x49800000"); a(f"v_cmp_le_f32 vcc, v{T+4}, v{T+8}"); a("s_nop 4"); a("s_and_b64 s[46:47], s[46:47], vcc")
    a("s_cmp_eq_u64 s[46:47], -1"); a("s_cbranch_scc1 {P}FAST")
    a("s_mov_b32 s25, s22"); a("s_mov_b32 s26, 64"); a(f"v_mov_b32 v{T+6}, 0xff800000"); a(f"v_mov_b32 v{T+7}, 0xff800000"); a(f"v_mov_b32 v{P[0]+5}, 0")
    a.lab("{P}FB")
    a(f"buffer_load_dwordx4 v[{P[0]}:{P[0]+3}], v{AK}, s[32:35], s25 offen"); a(f"buffer_load_dword v{P[0]+4}, v{AK2}, s[32:35], s25 offen")
    a("s_waitcnt vmcnt(0)")
    for q in range(NQ):
        s = S[q]; a(f"v_mfma_f32_32x32x16_bf16 v[{s}:{s+15}], v[{P[0]}:{P[0]+3}], v[{QL[q]}:{QL[q]+3}], 0")
    for q in range(NQ):
        s = S[q]; a(f"v_mfma_f32_32x32x8_bf16 v[{s}:{s+15}], v[{P[0]+4}:{P[0]+5}], v[{QH2[q]}:{QH2[q]+1}], v[{s}:{s+15}]")
    a("s_nop 7"); a("s_nop 7"); a("s_nop 3")
    for q in range(NQ):
        for i in range(0, 16, 2): a(f"v_max3_f32 v{T+6+q}, v{S[q]+i}, v{S[q]+i+1}, v{T+6+q}")
    a(f"s_add_u32 s25, s25, {KT}"); a("s_sub_u32 s26, s26, 1"); a("s_cmp_lg_u32 s26, 0"); a("s_cbranch_scc1 {P}FB")
    for q in range(NQ):
        a(f"v_mov_b32 v{T+8}, v{T+6+q}"); a("s_nop 1"); a(f"v_permlane32_swap_b32 v{T+8}, v{T+6+q}"); a("s_nop 1"); a(f"v_max_f32 v{T+6+q}, v{T+6+q}, v{T+8}")
        a(f"v_sub_f32 v{T+8}, 0, v{T+6+q}"); a(f"v_and_b32 v{T+9}, 0xffff0000, v{T+8}"); a(f"v_sub_f32 v{T+8}, v{T+8}, v{T+9}")
        a(f"v_lshrrev_b32 v{T+9}, 16, v{T+9}"); a(f"v_and_b32 v{T+8}, 0xffff0000, v{T+8}")
        a("s_mov_b32 exec_hi, 0"); a(f"v_or_b32 v{QH2[q]+1}, v{T+8}, v{T+9}"); a("s_mov_b64 exec, -1")
    a.lab("{P}FAST")
    roll = 'noroll' not in a.opt or 'attroll' in a.opt
    def off(t): return (t % 4) * KT if roll else ((t // 4) % NB) * CH + (t % 4) * KT
    def rdK(t):
        k = t % 2
        a(f"ds_read_b128 v[{KL[k]}:{KL[k]+3}], v{AK} offset:{off(t)}"); a(f"ds_read_b32 v{KH2[k]}, v{AK2} offset:{off(t)}")
    def rdV(t):
        v = V[t % 2]
        a(f"ds_read_b128 v[{v}:{v+3}], v{AV} offset:{off(t)}"); a(f"ds_read_b128 v[{v+4}:{v+7}], v{AV} offset:{off(t)+608}")
    def ma(t):
        s = S[t % 2]; k = t % 2
        a(f"v_mfma_f32_32x32x16_bf16 v[{s}:{s+15}], v[{KL[k]}:{KL[k]+3}], v[{QL[0]}:{QL[0]+3}], 0")
    def mb(t):
        s = S[t % 2]; k = t % 2
        a(f"v_mfma_f32_32x32x8_bf16 v[{s}:{s+15}], v[{KH2[k]}:{KH2[k]+1}], v[{QH2[0]}:{QH2[0]+1}], v[{s}:{s+15}]")
    def mc(t, m):
        v = V[t % 2] + 4*m; p = P[0] + 4*m
        a(f"v_mfma_f32_32x32x16_bf16 a[0:15], v[{v}:{v+3}], v[{p}:{p+3}], a[0:15]")
    a.wait_vm({('C', 0)}); a("s_barrier")
    stamp(a, 1)
    rdK(0); rdK(1); a("s_waitcnt lgkmcnt(2)"); ma(0); mb(0); a("s_nop 7"); a("s_nop 7")
    def tile(t, dyn=False):
        s = S[t % 2]
        if dyn and t % 4 == 2:
            a("s_add_u32 s61, s61, 1"); a(f"s_cmp_eq_u32 s61, {NB}"); a(f"s_cselect_b32 s62, {-(NB-1)*CH}, s50"); a("s_cselect_b32 s61, 0, s61")
        a("s_waitcnt lgkmcnt(0)")
        if dyn and t % 4 == 2:
            a(f"v_add_u32 v{AK}, s62, v{AK}"); a(f"v_add_u32 v{AK2}, s62, v{AK2}")
        if dyn and t % 4 == 0: a(f"v_add_u32 v{AV}, s62, v{AV}")
        if t % 4 == 2 and t + 2 < 64:
            c = (t + 2) // 4
            a.wait_vm({('C', c)}); a("s_barrier")
            if dyn:
                a("s_add_u32 m0, s23, s48"); a("s_min_u32 s24, s24, s63")
                a.vmem(f"buffer_load_dwordx4 v{T+1}, s[32:35], s24 offen lds", ('C', c+3))
                a.vmem(f"buffer_load_dwordx4 v{T+1}, s[32:35], s24 offen offset:1024 lds", ('C', c+3))
                a("s_mov_b32 exec_hi, 0"); a.vmem(f"buffer_load_dwordx4 v{T+1}, s[32:35], s24 offen offset:2048 lds", ('C', c+3)); a("s_mov_b64 exec, -1")
                a("s_mov_b32 s48, s49"); a("s_add_u32 s49, s49, s62"); a(f"s_add_u32 s24, s24, {CH}")
            elif c + 3 < 16: dma(c + 3)
        def ex(i0):
            for i in range(i0, i0 + 4): a(f"v_exp_f32 v{s+i}, v{s+i}")
        if t + 1 < 64: ma(t + 1)
        rdV(t)
        ex(0)
        if t > 0: mc(t - 1, 0)
        ex(4)
        if t + 1 < 64: mb(t + 1)
        if t + 2 < 64: rdK(t + 2)
        ex(8)
        if t > 0: mc(t - 1, 1)
        ex(12)
        for i in range(8): a(f"v_cvt_pk_bf16_f32 v{P[0]+i}, v{s+2*i}, v{s+2*i+1}")
    if not roll:
        for t in range(64): tile(t)
    else:
        a("s_mov_b32 s60, 15"); a("s_mov_b32 s61, 0"); a(f"s_mov_b32 s50, {CH}"); a(f"s_mov_b32 s48, {(NB-1)*CH}"); a("s_mov_b32 s49, 0")
        a(f"s_add_u32 s63, s22, {15*CH}"); a(f"s_add_u32 s24, s22, {4*CH}")
        tile(0); tile(1)
        a.lab("{P}ALOOP")
        for t in range(2, 6): tile(t, True)
        a("s_sub_u32 s60, s60, 1"); a("s_cmp_lg_u32 s60, 0"); a("s_cbranch_scc1 {P}ALOOP")
        tile(62); tile(63); a("s_waitcnt vmcnt(0)"); a.vm = []
    a("s_waitcnt lgkmcnt(0)"); mc(63, 0); mc(63, 1); stamp(a, 2)
    a("s_nop 7"); a("s_nop 7"); a("s_nop 3")
    a(f"v_and_b32 v{T+3}, 15, v{T}"); a(f"v_lshlrev_b32 v{T+3}, 4, v{T+3}")
    a(f"v_bfe_u32 v{T+4}, v{T}, 4, 1"); a(f"s_lshl_b32 s24, s18, 1"); a(f"v_add_u32 v{T+4}, s24, v{T+4}"); a(f"v_mul_u32_u24 v{T+4}, {18*1024}, v{T+4}"); a(f"v_add_u32 v{T+3}, v{T+3}, v{T+4}")
    a("s_mul_i32 s24, s19, 18"); a(f"v_lshrrev_b32 v{T+4}, 5, v{T}"); a(f"v_lshlrev_b32 v{T+4}, 2, v{T+4}"); a(f"v_add_u32 v{T+4}, s24, v{T+4}")
    for p, rho in enumerate([0, 2, 4, 6, 8]):
        dd = 8*(rho//4) + rho % 4
        a(f"v_add_u32 v{T+5}, {dd}, v{T+4}")
        a(f"v_lshrrev_b32 v{T+6}, 3, v{T+5}"); a(f"v_lshlrev_b32 v{T+6}, 8, v{T+6}")
        a(f"v_and_b32 v{T+5}, 7, v{T+5}"); a(f"v_lshl_add_u32 v{T+6}, v{T+5}, 1, v{T+6}"); a(f"v_add_u32 v{T+10+p}, v{T+6}, v{T+3}")
    a(f"s_mov_b32 s25, {2*18*1024}")
    for q in range(NQ):
        o = 0
        for i in range(11): a(f"v_accvgpr_read_b32 v{i}, a{O[q]+i}")
        a("s_nop 0")
        a(f"v_mov_b32 v{T+1}, v{o+10}"); a(f"v_mov_b32 v{T+2}, v{o+10}"); a("s_nop 1"); a(f"v_permlane32_swap_b32 v{T+1}, v{T+2}"); a("s_nop 1")
        a(f"v_rcp_f32 v{T+1}, v{T+1}"); a("s_nop 0")
        for p, rho in enumerate([0, 2, 4, 6, 8]):
            a(f"v_mul_f32 v{o+rho}, v{o+rho}, v{T+1}"); a(f"v_mul_f32 v{o+rho+1}, v{o+rho+1}, v{T+1}")
            a(f"v_cvt_pk_bf16_f32 v{P[q]+p}, v{o+rho}, v{o+rho+1}")
            if p == 4: a("s_mov_b32 exec_hi, 0")
            a.vmem(f"buffer_store_dword v{P[q]+p}, v{T+10+p}, s[40:43], {'s25' if q else '0'} offen{pol}", 'st')
            if p == 4: a("s_mov_b64 exec, -1")
    stamp(a, 3); stamp_out(a, 4, [256, 384, 512, 640, 760], T, 3)
    a("s_endpgm")

def k2(name="k2_kernel", opt=(), grid=768):
    a = Asm(); a.opt = opt; pol = " sc1"
    for o in opt:
        if o.startswith("p2_"): pol = " " + o[3:].replace("_", " ") if o != "p2_none" else ""
    if "attonly" in opt: a("s_add_u32 s2, s2, 256")
    stamp(a, 0)
    a("s_cmp_ge_u32 s2, 768"); a("s_cbranch_scc1 {P}END"); a("s_nop 0")
    if "attfirst" in opt:
        a("s_add_u32 s2, s2, 256"); a("s_cmp_ge_u32 s2, 768"); a("s_cselect_b32 s3, 768, 0"); a("s_sub_u32 s2, s2, s3")
    a("s_load_dwordx2 s[8:9], s[0:1], 48")
    a("s_load_dwordx2 s[16:17], s[0:1], 88")
    a(f"v_lshrrev_b32 v1, 6, v0"); a("s_nop 0"); a(f"v_readfirstlane_b32 s21, v1")
    a("s_cmp_ge_u32 s2, 256"); a("s_cbranch_scc1 {P}ATT")
    if "prio_gemm" in opt: a("s_setprio 3")
    gemm2(a, pol)
    a.lab("{P}ATT"); a.vm = []
    if "prio_att" in opt: a("s_setprio 3")
    attn(a, " sc1" if "osc1" in opt else "")
    a.lab("{P}END"); a("s_endpgm")
    return name, a.text().replace("{P}", name + "_"), kdesc(name, 96, acc=72), (grid, 256, 52224)

def k3(name="k3_kernel"):
    a = Asm(); a.opt = (); TD = 63
    ACC = 0; B3 = 24; AD = 36; G = 47; BI = 50; t = 56; A3 = 64
    a("s_cmp_ge_u32 s2, 256"); a("s_cbranch_scc1 {P}END"); a(f"v_mov_b32 v{TD}, v0")
    a("s_load_dwordx2 s[8:9], s[0:1], 16")
    a("s_load_dwordx2 s[10:11], s[0:1], 56")
    a("s_load_dwordx2 s[12:13], s[0:1], 72")
    a("s_load_dwordx2 s[16:17], s[0:1], 88")
    a(f"v_lshrrev_b32 v{t}, 6, v{TD}"); a("s_nop 0"); a(f"v_readfirstlane_b32 s21, v{t}")
    a("s_and_b32 s18, s2, 7"); a("s_lshr_b32 s19, s2, 3"); a("s_and_b32 s23, s19, 3"); a("s_lshr_b32 s24, s19, 2"); a("s_lshl_b32 s18, s18, 3"); a("s_add_u32 s24, s24, s18")
    a("s_mul_i32 s44, s24, 2*18*1024"); a("s_mul_i32 s26, s23, 288")
    g = Gemm(a, 18, 0, 576, 7, 6, 1, 1, 2, True, ACC, B3, A3, AD, 28, 32, 26, 44, 52, adirect=True)
    a(f"v_and_b32 v{t}, 63, v{TD}"); a(f"v_lshlrev_b32 v{AD+5}, 4, v{t}"); a(f"v_add_u32 v{AD+6}, {18*1024}, v{AD+5}")
    g.setup(21, t+1, TD)
    a("s_waitcnt lgkmcnt(0)")
    srd(a, 28, 16, WS_O, 2048*576*2); srd(a, 32, 8, 0, 576*576*2); srd(a, 36, 16, WS_P, NSPL*PSZ); srd(a, 40, 12, 0, 2048*576*2)
    srd(a, 48, 16, WS_G, 8192); srd(a, 56, 10, 0, 1152)
    g.prologue_issue()
    for i in range(24): a(f"v_mov_b32 v{i}, 0")
    a("s_mul_i32 s45, s24, 72"); a("s_mul_i32 s46, s23, 9"); a("s_add_u32 s45, s45, s46"); a("s_mul_i32 s46, s21, 3"); a("s_add_u32 s45, s45, s46"); a("s_lshl_b32 s45, s45, 9")
    a(f"v_lshlrev_b32 v{t+1}, 3, v{t}")
    PRB = 128
    for sp in range(NSPL):
        for mt in range(2):
            a(f"s_add_u32 s46, s45, {sp*PSZ + mt*36*512}")
            for j in range(3):
                r = PRB + ((mt*3+j)*8 + sp)*2
                a.vmem(f"buffer_load_dwordx2 v[{r}:{r+1}], v{t+1}, s[36:39], s46 offen offset:{512*j}", 'p')
    a(f"v_and_b32 v{t+2}, 15, v{t}"); a("s_lshl_b32 s46, s24, 5"); a(f"v_add_u32 v{t+2}, s46, v{t+2}"); a(f"v_lshlrev_b32 v{t+3}, 2, v{t+2}")
    a.vmem(f"buffer_load_dword v{G}, v{t+3}, s[48:51], 0 offen", 'p'); a.vmem(f"buffer_load_dword v{G+1}, v{t+3}, s[48:51], 0 offen offset:64", 'p')
    a("s_mul_i32 s46, s21, 96"); a("s_add_u32 s47, s46, s23") ; a("s_mul_i32 s47, s23, 288"); a("s_add_u32 s47, s47, s46")
    a(f"v_lshrrev_b32 v{t+3}, 4, v{t}"); a(f"v_lshlrev_b32 v{t+3}, 3, v{t+3}"); a(f"v_add_u32 v{t+3}, s47, v{t+3}")
    for j in range(3): a.vmem(f"buffer_load_dwordx2 v[{BI+2*j}:{BI+2*j+1}], v{t+3}, s[56:59], 0 offen offset:{32*j}", 'p')
    a(f"v_mul_u32_u24 v{AD+9}, 1152, v{t+2}"); a(f"v_add_u32 v{AD+9}, v{AD+9}, v{t+3}"); a(f"v_add_u32 v{AD+10}, {16*1152}, v{AD+9}")
    g.run()
    a.wait_vm({'p'})
    for mt in range(2):
        a(f"v_sub_f32 v{t+4}, 1.0, v{G+mt}")
        for j in range(3):
            acc = (mt*3+j)*4; x = t+5
            s0 = B3
            a(f"v_lshlrev_b32 v{s0}, 16, v{BI+2*j}"); a(f"v_and_b32 v{s0+1}, 0xffff0000, v{BI+2*j}"); a(f"v_lshlrev_b32 v{s0+2}, 16, v{BI+2*j+1}"); a(f"v_and_b32 v{s0+3}, 0xffff0000, v{BI+2*j+1}")
            for sp in range(NSPL):
                r = PRB + ((mt*3+j)*8 + sp)*2
                a(f"v_lshlrev_b32 v{s0+4}, 16, v{r}"); a(f"v_and_b32 v{s0+5}, 0xffff0000, v{r}"); a(f"v_lshlrev_b32 v{s0+6}, 16, v{r+1}"); a(f"v_and_b32 v{s0+7}, 0xffff0000, v{r+1}")
                a(f"v_pk_add_f32 v[{s0}:{s0+1}], v[{s0}:{s0+1}], v[{s0+4}:{s0+5}]"); a(f"v_pk_add_f32 v[{s0+2}:{s0+3}], v[{s0+2}:{s0+3}], v[{s0+6}:{s0+7}]")
            for r in range(4):
                a(f"v_mul_f32 v{s0+r}, v{t+4}, v{s0+r}"); a(f"v_fmac_f32 v{s0+r}, v{G+mt}, v{acc+r}")
            d = A3 + 2*(mt*3+j)
            a(f"v_cvt_pk_bf16_f32 v{d}, v{s0}, v{s0+1}"); a(f"v_cvt_pk_bf16_f32 v{d+1}, v{s0+2}, v{s0+3}")
            a.vmem(f"buffer_store_dwordx2 v[{d}:{d+1}], v{AD+9+mt}, s[40:43], 0 offen offset:{32*j}", 'st')
    a.lab("{P}END"); a("s_endpgm")
    return name, a.text().replace("{P}", name + "_"), kdesc(name, 224), (256, 192, 7*9216)
def kernels(): return [k2(), k3()]
```
